```python
import torch

def _softmax(x, axis=-1):
    return torch.softmax(x, dim=axis)

def _gelu(x):
    return torch.nn.functional.gelu(x, approximate='tanh')

def _silu(x):
    return torch.nn.functional.silu(x)

def _sigmoid(x):
    return torch.sigmoid(x)

def _layernorm(x, axis=-1, eps=1e-05):
    m = x.mean(dim=axis, keepdim=True)
    v = x.var(dim=axis, keepdim=True, unbiased=False)
    return (x - m) / torch.sqrt(v + eps)

def _scatter_add(tgt, idx, src, axis=0):
    return tgt.clone().index_add_(axis, idx, src)

def _segment_sum(src, seg, n):
    out = torch.zeros((n,) + src.shape[1:], dtype=src.dtype)
    return out.index_add_(0, seg, src)

def _pad(x, pw):
    flat = tuple((v for pair in reversed(pw) for v in pair))
    return torch.nn.functional.pad(x, flat)
kernel_name = 'adaLN_cond__mha_block_cached__dense_activation_silu__decode'

def setup_inputs():

    _w = lambda a: (lambda t: t.to(torch.bfloat16) if t.is_floating_point() else t)(torch.as_tensor(a))

    def _A_setup():
        B, Sq, D = (2, 1, 448)
        H, Sk, Dh = (16, 32768, 256)
        return {'x': _w((lambda *s: torch.randn(*s, dtype=torch.bfloat16) * 0.1)(B, Sq, D)), 'k_cache': _w((lambda *s: torch.randn(*s, dtype=torch.bfloat16) * 1.6)(B, H, Sk, Dh)), 'v_cache': _w((lambda *s: torch.randn(*s, dtype=torch.bfloat16) * 3.2)(B, H, Sk, Dh)), 'wq': _w((lambda *s: torch.randn(*s, dtype=torch.bfloat16) * 1.6)(D, H * Dh) * D ** (-0.5)), 'wo': _w((lambda *s: torch.randn(*s, dtype=torch.bfloat16) * 3.2)(H * Dh, D) * (H * Dh) ** (-0.5))}
    _A_in = _A_setup()

    def _B_setup():
        B, S, D, F = (2, 1, 448, 1792)
        return {'x': _w((lambda *s: torch.randn(*s, dtype=torch.bfloat16) * 0.1)(B, S, D)), 'w1': _w((lambda *s: torch.randn(*s, dtype=torch.bfloat16) * 3.2)(D, F) * D ** (-0.5)), 'w2': _w((lambda *s: torch.randn(*s, dtype=torch.bfloat16) * 3.2)(F, D) * F ** (-0.5))}
    _B_in = _B_setup()
    return {'A_x': _A_in['x'], 'A_k_cache': _A_in['k_cache'], 'A_v_cache': _A_in['v_cache'], 'A_wq': _A_in['wq'], 'A_wo': _A_in['wo'], 'B_x': _B_in['x'], 'B_w1': _B_in['w1'], 'B_w2': _B_in['w2'], 'c': _w((lambda *s: torch.randn(*s, dtype=torch.bfloat16) * 0.2)(2, 448) * 8.0), 'w_mod': _w((lambda *s: torch.randn(*s, dtype=torch.bfloat16) * 0.2)(448, 6 * 448) * 448 ** (-0.5) * 8.0)}

def reference(A_x, A_k_cache, A_v_cache, A_wq, A_wo, B_x, B_w1, B_w2, c, w_mod):

    def _A_ref(x, k_cache, v_cache, wq, wo):
        B, Sq, D = x.shape
        H, Dh = (16, 256)
        q = (lambda x, *d: x.permute(*d))((x @ wq).reshape(B, Sq, H, Dh), 0, 2, 1, 3)
        scores = torch.einsum('bhqd,bhkd->bhqk', q, k_cache) * Dh ** (-0.5)
        p = _softmax(scores, axis=-1)
        o = torch.einsum('bhqk,bhkd->bhqd', p, v_cache)
        return (lambda x, *d: x.permute(*d))(o, 0, 2, 1, 3).reshape(B, Sq, H * Dh) @ wo

    def _B_ref(x, w1, w2):
        h = torch.einsum('bsd,df->bsf', x, w1)
        h = _silu(h)
        out = torch.einsum('bsf,fd->bsd', h, w2)
        return out
    x = A_x
    mod = (_silu(c) @ w_mod).reshape(c.shape[0], 6, 1, -1)
    sa, ca, ga, sb, cb, gb = (mod[:, 0].clone(), mod[:, 1].clone(), mod[:, 2].clone(), mod[:, 3].clone(), mod[:, 4].clone(), mod[:, 5].clone())
    h = _layernorm(x, axis=-1) * (1 + ca) + sa
    x = x + ga * _A_ref(h, A_k_cache, A_v_cache, A_wq, A_wo)
    h = _layernorm(x, axis=-1) * (1 + cb) + sb
    x = x + gb * _B_ref(h, B_w1, B_w2)
    return x
```

```python
import re

TRANS = ('v_exp_f32', 'v_log_f32', 'v_rcp_f32', 'v_rsq_f32', 'v_sqrt_f32', 'v_sin_f32', 'v_cos_f32')
MFMA_PASSES = {'v_mfma_f32_16x16x32_bf16': 4, 'v_mfma_f32_16x16x16_bf16': 4, 'v_mfma_f32_16x16x16_bf16_1k': 4,
               'v_mfma_f32_32x32x16_bf16': 8}
XDL_D_TO_OTHER = {2: 5, 4: 8, 8: 12, 16: 20}
XDL_D_TO_C_OVERLAP = {2: 4, 4: 6, 8: 10, 16: 18}
XDL_C_WAR = {2: 1, 4: 3, 8: 7, 16: 15}
MAXD = 21

REG = re.compile(r'^(-|abs\(|\|)*([vsa])(\d+)\)?\|?$')
RANGE = re.compile(r'^(-)?([vsa])\[(\d+):(\d+)\]$')


def regs(op):
    op = op.strip()
    if op == 'vcc':
        return {'vcc'}
    if op in ('vcc_lo', 'vcc_hi'):
        return {'vcc'}
    if op in ('exec', 'exec_lo', 'exec_hi'):
        return {'exec'}
    if op == 'm0':
        return {'m0'}
    m = RANGE.match(op)
    if m:
        return {f'{m.group(2)}{i}' for i in range(int(m.group(3)), int(m.group(4)) + 1)}
    m = REG.match(op)
    if m:
        return {f'{m.group(2)}{m.group(3)}'}
    return set()


def split_ops(s):
    out, depth, cur = [], 0, ''
    for ch in s:
        if ch == '[':
            depth += 1
        if ch == ']':
            depth -= 1
        if ch == ',' and depth == 0:
            out.append(cur.strip())
            cur = ''
        else:
            cur += ch
    if cur.strip():
        out.append(cur.strip())
    return out


class Ins:
    def __init__(self, text):
        self.text = text
        t = text.split(';')[0].strip()
        self.label = t[:-1] if t.endswith(':') else None
        self.directive = t.startswith('.') and not self.label
        self.empty = (t == '')
        self.op = ''
        self.w, self.r = set(), set()
        self.kind = None
        self.states = 0
        self.target = None
        self.uncond = False
        self.dpp = False
        self.srcC = set()
        self.srcAB = set()
        self.store_data = set()
        self.lanesel = set()
        if self.label or self.directive or self.empty:
            return
        parts = t.split(None, 1)
        op = parts[0]
        rest = parts[1] if len(parts) > 1 else ''
        self.op = op
        self.states = 1
        ops = split_ops(rest)
        mods = ''
        if ops:
            last = ops[-1].split(None, 1)
            if len(last) > 1:
                ops[-1] = last[0]
                mods = last[1]
        base = re.sub(r'_(e32|e64|dpp|sdwa)$', '', op)
        self.base = base
        R = [regs(o) for o in ops]
        un = lambda L: set().union(*L) if L else set()
        if op == 's_nop':
            self.kind = 'nop'
            self.states = int(ops[0], 0) + 1
        elif op in ('s_branch',) or op.startswith('s_cbranch'):
            self.kind = 'branch'
            self.target = ops[0]
            self.uncond = op == 's_branch'
        elif op == 's_endpgm':
            self.kind = 'end'
            self.uncond = True
        elif op.startswith('s_load') or op.startswith('s_mem') or op.startswith('s_buffer_load') or op.startswith('s_atomic'):
            self.kind = 'smem'
            self.w = R[0]
            self.r = un(R[1:])
        elif op.startswith('s_'):
            self.kind = 'salu'
            if op.startswith('s_cmp') or op.startswith('s_bitcmp') or op in ('s_waitcnt', 's_barrier', 's_sleep', 's_setprio'):
                self.r = un(R)
            else:
                self.w = set(R[0])
                self.r = un(R[1:])
                if 'saveexec' in op:
                    self.w |= {'exec'}
        elif base in MFMA_PASSES:
            self.kind = 'mfma'
            self.passes = MFMA_PASSES[base]
            self.w = R[0]
            self.srcAB = R[1] | R[2]
            self.srcC = R[3]
            self.r = self.srcAB | self.srcC
        elif op.startswith('v_'):
            self.kind = 'valu'
            self.dpp = op.endswith('_dpp') or any(k in mods for k in ('quad_perm', 'row_', 'wave_'))
            self.w = set(R[0])
            self.r = un(R[1:])
            if base.startswith('v_cmpx'):
                self.w |= {'exec'}
            if base.startswith('v_permlane') and 'swap' in base:
                self.w = R[0] | R[1]
                self.r = R[0] | R[1]
            if base in ('v_add_co_u32', 'v_sub_co_u32', 'v_addc_co_u32', 'v_subb_co_u32'):
                self.w = R[0] | R[1]
                self.r = un(R[2:])
            if base.startswith('v_fmac') or base.startswith('v_dot2c') or self.dpp or base == 'v_writelane_b32':
                self.r |= R[0]
            if base in ('v_readlane_b32', 'v_writelane_b32'):
                self.lanesel = R[2]
            self.dstsel = ('dst_sel' in mods and 'dst_sel:DWORD' not in mods) or 'op_sel' in mods
        elif op.startswith('buffer_') or op.startswith('global_'):
            self.kind = 'vmem'
            allm = mods.split()
            if 'load' in op:
                if 'lds' in allm or '_lds_' in op:
                    self.r = un(R) | {'m0'}
                else:
                    self.w = R[0]
                    self.r = un(R[1:])
            elif 'store' in op:
                self.r = un(R)
                d = R[0] if op.startswith('buffer_') else R[1]
                if op.endswith('x3') or op.endswith('x4'):
                    self.store_data = d
            elif 'atomic' in op:
                if op.startswith('buffer_'):
                    self.r = un(R)
                    if 'sc0' in allm:
                        self.w = R[0]
                elif 'sc0' in allm:
                    self.w = R[0]
                    self.r = un(R[1:])
                else:
                    self.r = un(R)
            else:
                self.r = un(R)
        elif op.startswith('ds_'):
            self.kind = 'ds'
            if op.startswith('ds_read') or '_rtn' in op or 'permute' in op or 'swizzle' in op:
                self.w = R[0]
                self.r = un(R[1:])
            else:
                self.r = un(R)
        else:
            raise ValueError('unknown instruction: ' + text)


def vg(s):
    return {x for x in s if x[0] in 'va' and x != 'vcc'}


def sg(s):
    return {x for x in s if x[0] == 's' or x == 'vcc'}


def need(p, c):
    n = 0
    if p.kind == 'valu':
        pw, ps = vg(p.w), sg(p.w)
        if c.kind == 'mfma':
            if pw & c.r:
                n = max(n, 2)
            if 'exec' in p.w:
                n = max(n, 4)
        if c.kind == 'valu':
            if c.dpp and pw & c.r:
                n = max(n, 2)
            if c.dpp and 'exec' in p.w:
                n = max(n, 5)
            if c.base.startswith('v_permlane') and pw & c.r:
                n = max(n, 2)
            if c.base.startswith('v_permlane') and 'exec' in p.w:
                n = max(n, 4)
            if c.base in ('v_readlane_b32', 'v_readfirstlane_b32') and pw & c.r:
                n = max(n, 1)
            if c.base in ('v_readlane_b32', 'v_readfirstlane_b32', 'v_writelane_b32') and 'exec' in p.w:
                n = max(n, 4)
            if ps & c.r:
                n = max(n, 2)
            if ps & c.lanesel:
                n = max(n, 4)
            if p.base in TRANS and pw & c.r:
                n = max(n, 1)
            if p.dstsel and pw & (c.r | c.w):
                n = max(n, 1)
        if c.kind == 'vmem' and ps & c.r:
            n = max(n, 5)
    if p.kind == 'mfma':
        if c.kind == 'mfma':
            if p.w & c.srcAB:
                n = max(n, XDL_D_TO_OTHER[p.passes])
            if p.w & c.srcC and not (p.w == c.srcC and p.base == c.base):
                n = max(n, XDL_D_TO_C_OVERLAP[p.passes])
            if p.w & c.w and not (p.w & c.srcC):
                n = max(n, XDL_D_TO_C_OVERLAP[p.passes])
        elif c.kind in ('valu', 'vmem', 'ds'):
            if p.w & (c.r | c.w):
                n = max(n, XDL_D_TO_OTHER[p.passes])
            if c.kind == 'valu' and p.srcC & c.w:
                n = max(n, XDL_C_WAR[p.passes])
    if p.kind == 'vmem' and p.store_data:
        if p.store_data & c.w:
            n = max(n, 2 if c.kind in ('valu', 'mfma') else 1)
    if p.kind == 'salu' and 'm0' in p.w and 'm0' in c.r and c.kind in ('vmem', 'ds'):
        n = max(n, 1)
    return n


def fix(lines, verbose=False):
    ins = [Ins(l) for l in lines]
    total = 0
    start = 0
    while True:
        labels = {x.label: i for i, x in enumerate(ins) if x.label}
        jumps = {}
        for i, x in enumerate(ins):
            if x.kind == 'branch':
                jumps.setdefault(labels[x.target], []).append(i)

        def deficit(ci):
            c = ins[ci]
            worst = 0
            stack = [(ci - 1, 0, True)]
            seen = {}
            while stack:
                i, d, fall = stack.pop()
                while i >= 0 and d < MAXD:
                    x = ins[i]
                    if fall and x.uncond:
                        break
                    fall = True
                    if seen.get(i, 99) <= d:
                        break
                    seen[i] = d
                    if x.label:
                        for j in jumps.get(i, []):
                            stack.append((j, d, False))
                    elif x.kind:
                        worst = max(worst, need(x, c) - d)
                        d += x.states
                    i -= 1
            return worst

        changed = False
        i = start
        while i < len(ins):
            x = ins[i]
            if x.kind in ('valu', 'mfma', 'vmem', 'ds'):
                k = deficit(i)
                if k > 0:
                    if verbose:
                        print('pad', k, 'before', x.text.strip())
                    pads = []
                    while k > 0:
                        m = min(k, 16)
                        pads.append(Ins(f'    s_nop {m - 1}'))
                        k -= m
                    ins[i:i] = pads
                    total += len(pads)
                    changed = True
                    start = i
                    break
            i += 1
        if not changed:
            break
    return [x.text for x in ins], total
```

```python
import sys, os, struct
sys.path.insert(0, os.path.dirname(os.path.abspath(__file__)))
import hazard

NAME = 'adaLN_cond__mha_block_cached__dense_activation_silu__decode'
KERNEL = NAME + '_kernel'

WS_QP, WS_ML, WS_OP, WS_AP, WS_YP, WS_M2, WS_ST = 0x0, 0x80000, 0x100000, 0x140000, 0x150000, 0x170000, 0x200000
WS_SIZE = 0x400000
L_SC, L_Q, L_CNT, L_O, L_RED, L_ACT, L_H, L_X1, L_STAT = 0, 16384, 16896, 17408, 21504, 23552, 25600, 26112, 28160
LDS_BYTES = 32768
DBG_INIT = 4

sS, sBH, sB, sHEAD, sW, sJ = 30, 31, 32, 33, 34, 35
R_K, R_V, R_WS = 36, 40, 44
R_WMOD, R_WQ, R_C, R_X, R_DBG, R_WA, R_WB, R_OUT = 36, 40, 48, 52, 56, 60, 64, 68
sPLO, sPHI, sSPIN = 72, 73, 74
sT0, sT1, sT2, sT3, sT4 = 75, 76, 77, 78, 79
STAMP0 = 80
DPPM = 'row_mask:0xf bank_mask:0xf'


def f2u(x):
    return '0x%08x' % struct.unpack('<I', struct.pack('<f', x))[0]


LOG2E = 1.4426950408889634


def vr(a, n):
    return f'v[{a}:{a + n - 1}]' if n > 1 else f'v{a}'


def sr(a, n):
    return f's[{a}:{a + n - 1}]'


class Gen:
    def __init__(self, **o):
        self.o = dict(fl=(5,), fl2=8, tail=64, ring=48, diag=False, wpol='', ppol='', kvpol='nt', spin=1 << 20,
                      resv=4)
        self.o.update(o)
        self.L = []
        self.uid = 0

    def e(self, s):
        for x in s.split('\n'):
            x = x.strip()
            if x:
                self.L.append(x if x.endswith(':') else '    ' + x)

    def c(self, s):
        self.L.append('    ; ' + s)

    def lab(self, p):
        self.uid += 1
        return f'L_{p}_{self.uid}'

    def srd(self, r, p, size):
        self.e(f's_mov_b32 s{r}, s{p}\ns_mov_b32 s{r+1}, s{p+1}\ns_mov_b32 s{r+2}, {size:#x}\ns_mov_b32 s{r+3}, 0x20000')

    def stamp(self, k):
        if self.o['diag']:
            self.e(f's_memrealtime {sr(STAMP0 + 2 * k, 2)}')

    def stamp_init(self):
        if self.o['diag']:
            for k in range(10):
                self.e(f's_mov_b32 s{STAMP0 + 2 * k}, 0')

    def stamp_flush(self, wave_base):
        if not self.o['diag']:
            return
        e = self.e
        e('s_mov_b64 exec, -1\ns_waitcnt lgkmcnt(0)\nv_mov_b32 v5, 0')
        for k in range(10):
            e(f'v_writelane_b32 v5, s{STAMP0 + 2 * k}, {k}')
        e(f's_lshl_b32 s{sT0}, s2, 3\ns_add_u32 s{sT0}, s{sT0}, s{sW}\ns_add_u32 s{sT0}, s{sT0}, {wave_base}')
        e(f's_lshl_b32 s{sT0}, s{sT0}, 6\ns_add_u32 s{sT0}, s{sT0}, {WS_ST:#x}')
        e('v_lshlrev_b32 v6, 2, v0\ns_mov_b64 exec, 0xffff')
        e(f'buffer_store_dword v5, v6, {sr(R_WS, 4)}, s{sT0} offen')

    def spin_tail(self, loop, sleep=0):
        if sleep:
            self.e(f's_sleep {sleep}')
        self.e(f's_sub_u32 s{sSPIN}, s{sSPIN}, 1\ns_cmp_gt_i32 s{sSPIN}, 0\ns_cbranch_scc1 {loop}')

    def rnd(self, d, s):
        self.e(f'v_cvt_pk_bf16_f32 v{d}, v{s}, v{s}\nv_and_b32 v{d}, 0xffff0000, v{d}')

    def rnd2(self, a, b, t):
        self.e(f'v_cvt_pk_bf16_f32 v{t}, v{a}, v{b}\nv_lshlrev_b32 v{a}, 16, v{t}\nv_and_b32 v{b}, 0xffff0000, v{t}')

    def allred(self, op, regs, tmps, width):
        for sh in (8, 4, 2, 1):
            for r in regs:
                self.e(f'{op}_dpp v{r}, v{r}, v{r} row_ror:{sh} {DPPM}')
        self.rowred(op, regs, tmps, width)

    def rowred(self, op, regs, tmps, width):
        for sw in ((16,) if width == 32 else (16, 32)):
            for r, t in zip(regs, tmps):
                self.e(f'v_mov_b32 v{t}, v{r}')
            for r, t in zip(regs, tmps):
                self.e(f'v_permlane{sw}_swap_b32 v{r}, v{t}')
            for r, t in zip(regs, tmps):
                self.e(f'{op} v{r}, v{r}, v{t}')

    def div448(self, d, s, t):
        self.e(f'v_mul_f32 v{d}, {f2u(1 / 448)}, v{s}')
        self.e(f'v_fmamk_f32 v{t}, v{d}, {f2u(-448.0)}, v{s}')
        self.e(f'v_fmac_f32 v{d}, {f2u(1 / 448)}, v{t}')

    def silu(self, regs, tmps):
        e = self.e
        for r, t in zip(regs, tmps):
            e(f'v_mul_f32 v{t}, {f2u(-LOG2E)}, v{r}')
        for r, t in zip(regs, tmps):
            e(f'v_exp_f32 v{t}, v{t}')
        for r, t in zip(regs, tmps):
            e(f'v_add_f32 v{t}, 1.0, v{t}')
        for r, t in zip(regs, tmps):
            e(f'v_rcp_f32 v{t}, v{t}')
        for r, t in zip(regs, tmps):
            e(f'v_mul_f32 v{r}, v{r}, v{t}')

    def perm(self, raw, frag, ne):
        h = ne // 2
        for c in range(4):
            for r in range(h):
                x = raw + 4 * r + (c >> 1)
                y = x + 2
                self.e(f'v_perm_b32 v{frag + c * h + r}, v{y}, v{x}, s{sPHI if c & 1 else sPLO}')

    def mfma4(self, acc, a, frag, ne, first):
        h = ne // 2
        op = 'v_mfma_f32_16x16x32_bf16' if ne == 8 else 'v_mfma_f32_16x16x16_bf16'
        for c in range(4):
            d = vr(acc + 4 * c, 4)
            self.e(f'{op} {d}, {vr(a, h)}, {vr(frag + c * h, h)}, {"0" if first else d}')

    def rowloads(self, raw, voff, srd, soff, sstride, ne, pol):
        for k in range(ne):
            self.e(f'buffer_load_dwordx2 {vr(raw + 2 * k, 2)}, v{voff}, {sr(srd, 4)}, s{soff} offen {pol}')
            self.e(f's_add_u32 s{soff}, s{soff}, s{sstride}')

    def poll(self, loads, nreg, tmp, sleep=0):
        e = self.e
        lp, dn = self.lab('poll'), self.lab('polled')
        for d, t in loads:
            e(t)
        e(f'{lp}:')
        e('s_waitcnt vmcnt(0)')
        for i, (d, t) in enumerate(loads):
            src = d
            if nreg == 2:
                e(f'v_max_u32 v{tmp + (i & 1)}, v{d}, v{d + 1}')
                src = tmp + (i & 1)
            e(f'v_cmp_eq_u32 {sr(4 + 2 * i, 2)}, -1, v{src}')
        e(f's_mov_b64 vcc, {sr(4, 2)}')
        for i in range(1, len(loads)):
            e(f's_or_b64 vcc, vcc, {sr(4 + 2 * i, 2)}')
        e(f's_cmp_eq_u64 vcc, 0\ns_cbranch_scc1 {dn}')
        if sleep:
            e(f's_sleep {sleep}')
        for i, (d, t) in enumerate(loads):
            e(f's_mov_b64 exec, {sr(4 + 2 * i, 2)}')
            e(t)
        e('s_mov_b64 exec, -1')
        self.spin_tail(lp)
        e('s_waitcnt vmcnt(0)')
        e(f'{dn}:')

    def entry(self):
        e = self.e
        e('s_cmp_ge_u32 s2, 256\ns_cbranch_scc1 L_end')
        e('s_load_dwordx16 s[4:19], s[0:1], 0\ns_load_dwordx8 s[20:27], s[0:1], 64\ns_load_dwordx2 s[28:29], s[0:1], 96')
        self.stamp_init()
        self.stamp(0)
        e(f'v_lshrrev_b32 v1, 6, v0\nv_and_b32 v0, 63, v0\nv_readfirstlane_b32 s{sW}, v1')
        e(f'v_mov_b32 v2, {L_CNT}\nv_mov_b32 v4, 0\nv_mov_b32 v5, 0\nds_write_b64 v2, v[4:5]')
        e(f's_and_b32 s{sS}, s2, 7\ns_lshr_b32 s{sBH}, s2, 3\ns_lshr_b32 s{sB}, s2, 7\ns_and_b32 s{sHEAD}, s{sBH}, 15')
        e('v_lshrrev_b32 v1, 4, v0\nv_and_b32 v2, 15, v0')
        e(f's_cmp_lt_u32 s{sW}, 4\ns_cbranch_scc1 L_service')

    def stream(self):
        e, o = self.e, self.o
        RING, fl, fl2 = o['ring'], o['fl'], o['fl2']
        D = max(fl)
        vK, vV, vSW, vPR = 3, 4, 5, 6
        ACC, T0, T1, PC, PN, MSK, AB, QB, RB = 8, 16, 17, 18, 19, 20, 24, 32, 64
        sOFF, sCNT, sM, sSTEP = 48, 49, 50, 58
        N = 512
        e(f's_sub_u32 s{sW}, s{sW}, 4')
        e('s_setprio 2')
        self.c('K lane offset: key = n>>2, chunk = (n&3) + 4g')
        e(f'v_lshrrev_b32 v7, 2, v2\nv_and_b32 v8, 3, v2\nv_lshl_add_u32 v8, v1, 2, v8\nv_lshlrev_b32 v8, 4, v8')
        e(f'v_lshl_add_u32 v{vK}, v7, 9, v8')
        e(f's_lshl_b32 s{sOFF}, s2, 21\ns_lshl_b32 s{sCNT}, s{sW}, 11\ns_add_u32 s{sOFF}, s{sOFF}, s{sCNT}')
        e(f's_mov_b32 s59, s{sOFF}\ns_movk_i32 s{sSTEP}, 0x2000')
        e('s_waitcnt lgkmcnt(0)')
        self.srd(R_K, 6, 512 << 20)
        st = dict(L=0, P=0, lds=0)
        pend = []

        def reg(G):
            q = G % N
            return RB + 4 * (q if q < RING else q % 16)

        def load(f=None):
            G = st['L']
            if G == N:
                e(f's_mov_b32 s{sOFF}, s59')
            if f is None:
                f = fl[G % len(fl)]
            e(f's_waitcnt vmcnt({f - 1})')
            st['landed'] = max(st.get('landed', 0), G - (f - 1))
            isV = G >= N
            for G2 in range(st['P'], G):
                assert reg(G2) != reg(G), (G, G2)
            e(f'buffer_load_dwordx4 {vr(reg(G), 4)}, v{vV if isV else vK}, {sr(R_V if isV else R_K, 4)}, s{sOFF} offen offset:{256 * (G & 1)} {o["kvpol"]}')
            if G & 1:
                e(f's_add_u32 s{sOFF}, s{sOFF}, s{sSTEP}')
            st['L'] = G + 1

        def aprep(m):
            for r in range(4):
                e(f'v_and_b32_dpp v{AB + 4 * (m & 1) + r}, v{PC}, v{MSK + r} row_newbcast:{m & 15} {DPPM}')

        def proc():
            G = st['P']
            assert G < st['landed'], (G, st)
            q = G % N
            m, j = q >> 1, q & 1
            if G < N:
                u, M = m & 3, m >> 2
                d = vr(ACC + 4 * (M & 1), 4)
                first = (u == 0 and j == 0)
                e(f'v_mfma_f32_16x16x32_bf16 {d}, {vr(reg(G), 4)}, {vr(QB + 8 * u + 4 * j, 4)}, {"0" if first else d}')
                flush_one()
                if u == 3 and j == 1:
                    assert not pend
                    a = ACC + 4 * (M & 1)
                    pend.extend([None,
                                 f'v_mov_b32_dpp v{T0}, v{a} quad_perm:[0,0,0,0] {DPPM}',
                                 f'v_mov_b32_dpp v{T1}, v{a + 1} quad_perm:[1,1,1,1] {DPPM}',
                                 f'v_add_f32_dpp v{T0}, v{a + 2}, v{T0} quad_perm:[2,2,2,2] {DPPM}',
                                 f'v_add_f32_dpp v{T1}, v{a + 3}, v{T1} quad_perm:[3,3,3,3] {DPPM}',
                                 f'v_add_f32 v{T0}, v{T0}, v{T1}',
                                 ('W', M)])
            else:
                d = vr(ACC + 4 * j, 4)
                e(f'v_mfma_f32_16x16x32_bf16 {d}, {vr(AB + 4 * (m & 1), 4)}, {vr(reg(G), 4)}, {"0" if m == 0 else d}')
                if j == 0 and m + 1 < N // 2:
                    if (m + 1) & 15 == 0:
                        MM = (m + 1) >> 4
                        e(f's_waitcnt lgkmcnt(0)\nv_mov_b32 v{PC}, v{PN}')
                        e(f'ds_read_b32 v{PN}, v{vPR} offset:{L_SC + 256 * (MM + 1) - st["lds"]}')
                    aprep(m + 1)
            st['P'] = G + 1

        def flush_one():
            if pend:
                x = pend.pop(0)
                if isinstance(x, tuple):
                    M = x[1]
                    e(f'ds_write_b32 v{vSW}, v{T0} offset:{L_SC + 256 * (M >> 2) + 16 * (M & 3) - st["lds"]}')
                elif x:
                    e(x)

        def catchup(base):
            k = 0
            while st['L'] < base + 64 + D:
                budget = 1 if k < D else 6
                while budget and st['P'] < min(st['landed'], base + 64, st['L'] - D):
                    proc()
                    budget -= 1
                load()
                k += 1
            while st['P'] < base + 64:
                proc()

        def steady(base, i0, i1, areg):
            assert st['P'] == base + 32 * i0 and st['L'] == st['P'] + D
            lp = self.lab('st')
            e(f's_mov_b32 s{sCNT}, {i1 - i0}')
            e(f'{lp}:')
            p0 = list(pend)
            for _ in range(32):
                load()
                proc()
            chk = lambda p: [('W', x[1] & 3) if isinstance(x, tuple) else x for x in p]
            assert chk(p0) == chk(pend)
            e(f'v_add_u32 v{areg}, 0x100, v{areg}')
            e(f's_sub_u32 s{sCNT}, s{sCNT}, 1\ns_cmp_lg_u32 s{sCNT}, 0\ns_cbranch_scc1 {lp}')
            adv = 32 * (i1 - i0 - 1)
            st['L'] += adv
            st['P'] += adv
            st['landed'] += adv
            st['lds'] += 256 * (i1 - i0)
            for i, x in enumerate(pend):
                if isinstance(x, tuple):
                    pend[i] = ('W', x[1] + 4 * (i1 - i0 - 1))

        self.c('K run-ahead')
        while st['L'] < D:
            load()
        self.srd(R_V, 8, 512 << 20)
        self.srd(R_WS, 28, WS_SIZE)
        e(f'v_lshlrev_b32 v7, 4, v2\nv_lshl_add_u32 v{vV}, v1, 9, v7')
        self.c('score write address: wave*4096 + 64g + 4(n>>2); p read address: wave*4096 + 4*lane')
        e(f's_lshl_b32 s{sCNT}, s{sW}, 12')
        e(f'v_and_b32 v7, 12, v2\nv_lshl_add_u32 v7, v1, 6, v7\nv_add_u32 v{vSW}, s{sCNT}, v7')
        e(f'v_lshl_add_u32 v{vPR}, v0, 2, s{sCNT}')
        self.c('PV selector masks')
        e('v_and_b32 v7, 1, v2\nv_lshlrev_b32 v7, 4, v7\nv_mov_b32 v9, 0xffff\nv_lshlrev_b32 v7, v7, v9\nv_lshrrev_b32 v9, 1, v2')
        for r in range(4):
            e(f'v_cmp_eq_u32 vcc, {r}, v9\nv_cndmask_b32 v{MSK + r}, 0, v7, vcc')
        for u in range(4):
            e(f's_mov_b32 s{sM + 2 * u}, {0x000f000f << (4 * u):#x}\ns_mov_b32 s{sM + 2 * u + 1}, s{sM + 2 * u}')
        e('s_barrier')
        while st['L'] < RING - o['resv']:
            load()
        self.stamp(1)
        e('s_barrier')
        self.stamp(2)
        e(f'ds_read_b128 {vr(AB, 4)}, v8 offset:{L_Q}\nds_read_b128 {vr(AB + 4, 4)}, v8 offset:{L_Q + 256}')
        ops = [f'v_cndmask_b32 v{QB + 8 * u + r}, 0, v{AB + r}, {sr(sM + 2 * u, 2)}' for u in range(4) for r in range(8)]
        while st['L'] < RING:
            load()
        e('s_waitcnt lgkmcnt(0)')
        for x in ops:
            e(x)
        catchup(0)
        steady(0, 2, 15, vSW)
        for _ in range(32):
            load()
            proc()
        while pend:
            flush_one()
        e('s_waitcnt lgkmcnt(0)')
        self.stamp(3)
        e('s_barrier')
        st['lds'] = 0
        self.c('V run-ahead')
        while st['L'] < N + RING - o['resv']:
            load()
        self.stamp(4)
        e('s_barrier')
        self.stamp(5)
        e(f'ds_read_b32 v{PC}, v{vPR} offset:{L_SC}\nds_read_b32 v{PN}, v{vPR} offset:{L_SC + 256}')
        while st['L'] < N + RING:
            load()
        e('s_waitcnt lgkmcnt(0)')
        aprep(0)
        catchup(N)
        ntail = max(1, (o['tail'] + 31) // 32)
        steady(N, 2, 16 - ntail, vPR)
        f2 = fl2 if o['tail'] else None
        while st['L'] < 2 * N:
            load(f2)
            while st['P'] < st['landed'] and st['P'] <= st['L'] - 1 - (f2 or D):
                proc()
        self.stamp(6)
        while st['P'] < 2 * N:
            if st['P'] >= st['landed']:
                e(f's_waitcnt vmcnt({st["L"] - st["P"] - 1})')
                st['landed'] = st['P'] + 1
            proc()
        self.c('per-wave o partial -> LDS')
        e(f's_lshl_b32 s{sCNT}, s{sW}, 10')
        e(f'v_lshlrev_b32 v7, 5, v2\nv_lshl_add_u32 v7, v1, 4, v7\nv_add_u32 v7, s{sCNT}, v7')
        e('s_mov_b32 exec_hi, 0')
        e(f'ds_write_b128 v7, {vr(ACC, 4)} offset:{L_O}\nds_write_b128 v7, {vr(ACC + 4, 4)} offset:{L_O + 512}')
        e('s_mov_b64 exec, -1\nv_lshlrev_b32 v7, 4, v0')
        e(f's_lshl_b32 s{sCNT}, s2, 10\ns_add_u32 s{sCNT}, s{sCNT}, {WS_OP:#x}')
        e('s_waitcnt lgkmcnt(0)')
        self.stamp(7)
        e('s_barrier')
        e(f's_cmp_lg_u32 s{sW}, 0\ns_cbranch_scc1 L_stream_done')
        for w in range(4):
            e(f'ds_read_b128 {vr(32 + 4 * w, 4)}, v7 offset:{L_O + 1024 * w}')
        e('s_waitcnt lgkmcnt(0)')
        for r in range(4):
            e(f'v_add_f32 v{32 + r}, v{32 + r}, v{36 + r}\nv_add_f32 v{40 + r}, v{40 + r}, v{44 + r}')
        for r in range(4):
            e(f'v_add_f32 v{32 + r}, v{32 + r}, v{40 + r}')
        for r in range(4):
            e(f'v_min_u32 v{32 + r}, -2, v{32 + r}')
        e(f'buffer_store_dwordx4 v[32:35], v7, {sr(R_WS, 4)}, s{sCNT} offen sc1')
        self.stamp(8)
        e('L_stream_done:')
        self.stamp_flush(4)
        e('s_endpgm')

    def service(self):
        e, o = self.e, self.o
        wp, pp = o['wpol'], o['ppol']
        vG, vN, vB, vI = 1, 2, 3, 4
        e('L_service:')
        e(f'v_lshrrev_b32 v{vB}, 5, v0\nv_and_b32 v{vI}, 31, v0')
        e(f's_lshl_b32 s{sJ}, s{sS}, 1\ns_add_u32 s{sJ}, s{sJ}, s{sB}')
        e(f's_mov_b32 s{sPLO}, 0x05040100\ns_mov_b32 s{sPHI}, 0x07060302\ns_mov_b32 s{sSPIN}, {o["spin"]}')
        aC, aX, aXE, aWM, aWM2, aWQ = 5, 6, 7, 8, 9, 10
        CR, XR, XE, RAW, RAWQ, FR, ACC, AF = 12, 14, 21, 64, 120, 136, 168, 184
        e(f'v_mul_u32_u24 v11, 896, v{vB}')
        e(f's_mul_i32 s{sT0}, s{sW}, 224\nv_lshl_add_u32 v{aC}, v{vI}, 3, v11\nv_add_u32 v{aC}, s{sT0}, v{aC}')
        e(f'v_mul_u32_u24 v{aX}, 28, v{vI}\nv_add_u32 v{aX}, v{aX}, v11')
        e(f's_lshl_b32 s{sT0}, s{sJ}, 6\nv_lshl_add_u32 v{aXE}, v{vI}, 1, v11\nv_add_u32 v{aXE}, s{sT0}, v{aXE}')
        e(f's_lshl_b32 s{sT1}, s{sBH}, 7\ns_add_u32 s{sT1}, s{sT1}, 1792\ns_cmp_lt_u32 s{sS}, 7')
        e(f's_cselect_b32 s{sT0}, s{sT0}, s{sT1}\ns_cselect_b32 s{sT1}, 832, 0')
        e(f'v_lshrrev_b32 v11, 3, v{vN}\nv_mul_u32_u24 v11, s{sT1}, v11\nv_lshl_add_u32 v11, v{vN}, 3, v11\nv_add_u32 v11, s{sT0}, v11')
        e(f'v_mul_u32_u24 v{aWM2}, {4 * 5376}, v{vG}\nv_lshl_add_u32 v{aWM}, v{aWM2}, 1, v11\nv_add_u32 v{aWM2}, v{aWM2}, v11')
        e(f's_lshl_b32 s{sT0}, s{sHEAD}, 9\ns_lshl_b32 s{sT1}, s{sW}, 7\ns_add_u32 s{sT0}, s{sT0}, s{sT1}')
        e(f's_lshl_b32 s{sT1}, s{sJ}, 18\ns_add_u32 s{sT0}, s{sT0}, s{sT1}')
        e(f'v_lshlrev_b32 v11, 3, v{vN}\nv_lshl_add_u32 v{aWQ}, v{vG}, 16, v11\nv_add_u32 v{aWQ}, s{sT0}, v{aWQ}')
        e(f's_mul_i32 s{sT2}, s{sW}, {112 * 5376}\ns_movk_i32 s{sT3}, 5376')
        e('s_waitcnt lgkmcnt(0)')
        self.srd(R_C, 20, 1792)
        self.srd(R_X, 4, 1792)
        self.srd(R_WMOD, 22, 448 * 5376)
        e(f'buffer_load_dwordx2 {vr(CR, 2)}, v{aC}, {sr(R_C, 4)}, 0 offen')
        e(f'buffer_load_dwordx4 {vr(XR, 4)}, v{aX}, {sr(R_X, 4)}, 0 offen')
        e(f'buffer_load_dwordx3 {vr(XR + 4, 3)}, v{aX}, {sr(R_X, 4)}, 0 offen offset:16')
        e(f'buffer_load_ushort v{XE}, v{aXE}, {sr(R_X, 4)}, 0 offen')
        for t in range(3):
            self.rowloads(RAW + 16 * t, aWM, R_WMOD, sT2, sT3, 8, pp)
            e(f's_add_u32 s{sT2}, s{sT2}, {24 * 5376}')
        self.rowloads(RAW + 48, aWM2, R_WMOD, sT2, sT3, 4, pp)
        self.srd(R_WQ, 10, 448 * 8192)
        e(f's_mov_b32 s{sT2}, 0\ns_movk_i32 s{sT3}, 0x2000')
        self.rowloads(RAWQ, aWQ, R_WQ, sT2, sT3, 8, pp)
        e('s_barrier')
        self.srd(R_WS, 28, WS_SIZE)
        self.srd(R_DBG, 26, 256)
        self.srd(R_OUT, 24, 1792)
        self.srd(R_WB, 18, 1792 * 896)
        self.c('R_WA = wo for even heads, w1 for odd heads')
        e(f's_bitcmp1_b32 s{sHEAD}, 0')
        e(f's_cselect_b32 s{R_WA}, s16, s12\ns_cselect_b32 s{R_WA + 1}, s17, s13')
        e(f's_mov_b32 s{sT0}, {448 * 3584}\ns_cselect_b32 s{R_WA + 2}, s{sT0}, {4096 * 896}\ns_mov_b32 s{R_WA + 3}, 0x20000')
        aACTw, aACTr, aACTr2 = 5, 22, 23
        self.c('silu(c) -> LDS -> A fragments')
        e(f's_lshl_b32 s{sT0}, s{sW}, 9')
        e(f'v_lshlrev_b32 v{aACTw}, 3, v0\nv_add_u32 v{aACTw}, s{sT0}, v{aACTw}')
        e(f'v_bfe_u32 v11, v{vN}, 2, 1\nv_lshlrev_b32 v11, 8, v11\nv_add_u32 v11, s{sT0}, v11')
        e(f'v_lshl_add_u32 v{aACTr}, v{vG}, 4, v11\nv_lshl_add_u32 v{aACTr2}, v{vG}, 3, v11')
        e('s_waitcnt vmcnt(39)')
        e(f'v_lshlrev_b32 v24, 16, v{CR}\nv_and_b32 v25, 0xffff0000, v{CR}\nv_lshlrev_b32 v26, 16, v{CR + 1}\nv_and_b32 v27, 0xffff0000, v{CR + 1}')
        self.silu([24, 25, 26, 27], [28, 29, 30, 31])
        e(f'v_cvt_pk_bf16_f32 v{CR}, v24, v25\nv_cvt_pk_bf16_f32 v{CR + 1}, v26, v27')
        e(f'ds_write_b64 v{aACTw}, {vr(CR, 2)} offset:{L_ACT}')
        for t in range(3):
            e(f'ds_read_b128 {vr(AF + 4 * t, 4)}, v{aACTr} offset:{L_ACT + 64 * t}')
        e(f'ds_read_b64 {vr(AF + 12, 2)}, v{aACTr2} offset:{L_ACT + 192}')
        self.c('layernorm statistics of x, batch = lane>>5')
        e('s_waitcnt vmcnt(36)')
        XF = 24
        for k in range(7):
            e(f'v_lshlrev_b32 v{XF + 2 * k}, 16, v{XR + k}\nv_and_b32 v{XF + 2 * k + 1}, 0xffff0000, v{XR + k}')
        S, MEAN, TT, RINV, NRM = 38, 39, 40, 41, 42
        e(f'v_add_f32 v{S}, v{XF}, v{XF + 1}\nv_add_f32 v{TT}, v{XF + 2}, v{XF + 3}')
        for k in range(4, 14, 2):
            e(f'v_add_f32 v{S}, v{S}, v{XF + k}\nv_add_f32 v{TT}, v{TT}, v{XF + k + 1}')
        e(f'v_add_f32 v{S}, v{S}, v{TT}')
        self.allred('v_add_f32', [S], [TT], 32)
        self.div448(MEAN, S, TT)
        for k in range(14):
            e(f'v_sub_f32 v{XF + k}, v{XF + k}, v{MEAN}')
        e(f'v_mul_f32 v{S}, v{XF}, v{XF}\nv_mul_f32 v{TT}, v{XF + 1}, v{XF + 1}')
        for k in range(2, 14, 2):
            e(f'v_fmac_f32 v{S}, v{XF + k}, v{XF + k}\nv_fmac_f32 v{TT}, v{XF + k + 1}, v{XF + k + 1}')
        e(f'v_add_f32 v{S}, v{S}, v{TT}')
        self.allred('v_add_f32', [S], [TT], 32)
        self.div448(RINV, S, TT)
        self.rnd2(MEAN, RINV, TT)
        e(f'v_add_f32 v{RINV}, {f2u(1e-5)}, v{RINV}')
        self.rnd(RINV, RINV)
        e(f'v_sqrt_f32 v{RINV}, v{RINV}')
        self.rnd(RINV, RINV)
        e(f'v_rcp_f32 v{RINV}, v{RINV}')
        e(f'v_lshlrev_b32 v{NRM}, 16, v{XE}\nv_sub_f32 v{NRM}, v{NRM}, v{MEAN}')
        self.rnd(NRM, NRM)
        e(f'v_mul_f32 v{NRM}, v{NRM}, v{RINV}')
        self.rnd(NRM, NRM)
        aREDw, aREDr, aCNT, ONE, aHw, aHr, aQP = 24, 25, 26, 27, 28, 29, 30
        e(f's_lshl_b32 s{sT0}, s{sW}, 9')
        e(f'v_lshlrev_b32 v{aREDw}, 4, v{vI}\nv_add_u32 v{aREDw}, s{sT0}, v{aREDw}')
        e(f'v_lshlrev_b32 v{aREDr}, 2, v{vI}\nv_lshl_add_u32 v{aREDr}, v{vB}, 8, v{aREDr}\nv_add_u32 v{aREDr}, {L_RED}, v{aREDr}')
        e(f'v_mov_b32 v{aCNT}, {L_CNT}\nv_mov_b32 v{ONE}, 1')
        e(f's_lshl_b32 s{sT0}, s{sW}, 7')
        e(f'v_lshl_add_u32 v{aHw}, v0, 1, s{sT0}')
        e(f'v_bfe_u32 v11, v{vN}, 2, 1\nv_lshlrev_b32 v11, 6, v11\nv_lshl_add_u32 v11, v{vG}, 4, v11\nv_add_u32 v{aHr}, s{sT0}, v11')
        e(f'v_and_b32 v11, 1, v{vG}\nv_lshlrev_b32 v11, 14, v11\nv_lshl_add_u32 v{aQP}, v{vN}, 4, v11')
        e(f's_lshl_b32 s{sT2}, s{sHEAD}, 15\ns_lshl_b32 s{sT0}, s{sJ}, 10\ns_add_u32 s{sT2}, s{sT2}, s{sT0}')
        e(f's_lshl_b32 s{sT0}, s{sW}, 8\ns_add_u32 s{sT2}, s{sT2}, s{sT0}')
        self.stamp(1)
        self.c('mod slice GEMV (both batches)')
        e('s_waitcnt lgkmcnt(0)')
        for t in range(4):
            ne = 8 if t < 3 else 4
            e(f's_waitcnt vmcnt({[28, 20, 12, 8][t]})')
            self.perm(RAW + 16 * t, FR + 16 * (t & 1), ne)
            self.mfma4(ACC, AF + 4 * t, FR + 16 * (t & 1), ne, t == 0)
        e('s_waitcnt vmcnt(0)')
        self.stamp(2)
        self.perm(RAWQ, FR, 8)
        for c in range(1, 4):
            e(f'v_mov_b32 v{ACC + c}, v{ACC + 4 * c}')
        e(f'ds_write_b128 v{aREDw}, {vr(ACC, 4)} offset:{L_RED}')
        e(f's_mov_b64 exec, 1\nds_add_u32 v{aCNT}, v{ONE}\ns_mov_b64 exec, -1')
        lp, dn = self.lab('sy'), self.lab('syd')
        e(f'{lp}:\nds_read_b32 v32, v{aCNT}\ns_waitcnt lgkmcnt(0)\nv_readfirstlane_b32 s{sT0}, v32\ns_cmp_ge_u32 s{sT0}, 4\ns_cbranch_scc1 {dn}')
        self.spin_tail(lp)
        e(f'{dn}:')
        e(f'ds_read2_b32 v[32:33], v{aREDr} offset0:0 offset1:32\nds_read2_b32 v[34:35], v{aREDr} offset0:128 offset1:160')
        e(f'v_add_u32 v{aREDr}, 1024, v{aREDr}')
        e(f'ds_read2_b32 v[36:37], v{aREDr} offset0:0 offset1:32\nds_read2_b32 v[38:39], v{aREDr} offset0:128 offset1:160')
        e('s_waitcnt lgkmcnt(0)')
        e('v_add_f32 v32, v32, v34\nv_add_f32 v33, v33, v35\nv_add_f32 v36, v36, v38\nv_add_f32 v37, v37, v39')
        e('v_add_f32 v32, v32, v36\nv_add_f32 v33, v33, v37')
        self.rnd2(32, 33, 34)
        e(f's_cmp_eq_u32 s{sS}, 7\ns_cbranch_scc1 L_mod2')
        self.c('h slice, then its contribution to q')
        e('v_add_f32 v33, 1.0, v33')
        self.rnd(33, 33)
        e(f'v_mul_f32 v33, v33, v{NRM}')
        self.rnd(33, 33)
        e('v_add_f32 v33, v33, v32\nv_cvt_pk_bf16_f32 v33, v33, v33')
        e(f'ds_write_b16 v{aHw}, v33 offset:{L_H}\nds_read_b128 {vr(AF, 4)}, v{aHr} offset:{L_H}\ns_waitcnt lgkmcnt(0)')
        self.mfma4(ACC, AF, FR, 8, True)
        for c in range(1, 4):
            e(f'v_mov_b32 v{ACC + c}, v{ACC + 4 * c}')
        e('s_mov_b32 exec_hi, 0')
        e(f'buffer_store_dwordx4 {vr(ACC, 4)}, v{aQP}, {sr(R_WS, 4)}, s{sT2} offen sc1')
        self.stamp(3)
        e(f's_mov_b64 exec, 1\ns_waitcnt vmcnt(0)\nds_add_rtn_u32 v32, v{aCNT}, v{ONE} offset:4\ns_waitcnt lgkmcnt(0)')
        e(f'v_readfirstlane_b32 s{sT0}, v32\ns_lshl_b32 s{sT1}, s{sHEAD}, 4\ns_cmp_lg_u32 s{sT0}, 3\ns_cbranch_scc1 L_qpub')
        e(f'buffer_atomic_add v{ONE}, off, {sr(R_DBG, 4)}, s{sT1} sc1')
        e('s_branch L_qpub')
        e('L_mod2:')
        self.c('ga, sb, cb, gb block published by wave 0 of the split-7 workgroups')
        e(f's_cmp_lt_u32 s{sBH}, 28\ns_cselect_b32 s{sT0}, s{sW}, 1\ns_cmp_lg_u32 s{sT0}, 0\ns_cbranch_scc1 L_qpub')
        e(f'v_lshlrev_b32 v11, 2, v{vI}\nv_lshl_add_u32 v11, v{vB}, 13, v11')
        e(f's_lshl_b32 s{sT0}, s{sBH}, 8\ns_add_u32 s{sT0}, s{sT0}, {WS_M2:#x}')
        e(f'buffer_store_dword v32, v11, {sr(R_WS, 4)}, s{sT0} offen sc1')
        e(f'buffer_store_dword v33, v11, {sr(R_WS, 4)}, s{sT0} offen offset:128 sc1')
        e('L_qpub:')
        e('s_mov_b64 exec, -1')
        e(f's_cmp_lg_u32 s{sW}, 0\ns_cbranch_scc1 L_qready')
        self.c('wave 0: wait for the 14 partial q rows, sum, round to bf16')
        e(f's_lshl_b32 s{sT1}, s{sHEAD}, 4\nv_lshlrev_b32 v11, 4, v0')
        e(f's_lshl_b32 s{sT2}, s{sHEAD}, 15\ns_lshl_b32 s{sT0}, s{sB}, 14\ns_add_u32 s{sT2}, s{sT2}, s{sT0}')
        lp, dn = self.lab('qp'), self.lab('qpd')
        e('s_mov_b64 exec, 1')
        e(f'{lp}:\nbuffer_load_dword v32, off, {sr(R_DBG, 4)}, s{sT1} sc1\ns_waitcnt vmcnt(0)')
        e(f'v_readfirstlane_b32 s{sT0}, v32\ns_cmp_ge_u32 s{sT0}, 14\ns_cbranch_scc1 {dn}')
        self.spin_tail(lp)
        e(f'{dn}:\ns_mov_b64 exec, -1')
        self.stamp(4)
        for j in range(14):
            e(f'buffer_load_dwordx4 {vr(RAW + 4 * j, 4)}, v11, {sr(R_WS, 4)}, s{sT2} offen offset:{1024 * (j & 3)} sc1')
            if j & 3 == 3:
                e(f's_add_u32 s{sT2}, s{sT2}, 0x1000')
        e('v_lshlrev_b32 v11, 3, v0')
        for j in range(1, 14):
            e(f's_waitcnt vmcnt({13 - j})')
            for r in range(4):
                e(f'v_add_f32 v{RAW + r}, v{RAW + r}, v{RAW + 4 * j + r}')
        e(f'v_cvt_pk_bf16_f32 v32, v{RAW}, v{RAW + 1}\nv_cvt_pk_bf16_f32 v33, v{RAW + 2}, v{RAW + 3}')
        e(f'ds_write_b64 v11, v[32:33] offset:{L_Q}\ns_waitcnt lgkmcnt(0)')
        self.stamp(5)
        e('L_qready:')
        e('s_barrier')

        sROLE, sF = 20, 21
        e(f's_lshr_b32 s{sF}, s{sHEAD}, 1\ns_lshl_b32 s{sF}, s{sF}, 3\ns_add_u32 s{sF}, s{sF}, s{sS}')
        e(f's_cmp_lt_u32 s{sF}, 28\ns_cselect_b32 s{sT0}, 2, 0\ns_cmp_lt_u32 s{sS}, 7\ns_cselect_b32 s{sT1}, 1, 0')
        e(f's_bitcmp1_b32 s{sHEAD}, 0\ns_cselect_b32 s{sROLE}, s{sT0}, s{sT1}')
        self.c('wave 0 marks this workgroup\'s hand-off slots empty, then reports')
        e(f's_cmp_lg_u32 s{sW}, 0\ns_cbranch_scc1 L_cleared')
        e('v_mov_b32 v32, -1\nv_mov_b32 v33, -1\nv_mov_b32 v34, -1\nv_mov_b32 v35, -1\nv_lshlrev_b32 v11, 4, v0')
        e(f's_lshl_b32 s{sT0}, s2, 10\ns_add_u32 s{sT0}, s{sT0}, {WS_OP:#x}')
        e(f'buffer_store_dwordx4 v[32:35], v11, {sr(R_WS, 4)}, s{sT0} offen sc1')
        e(f's_lshl_b32 s{sT0}, s2, 5\ns_add_u32 s{sT0}, s{sT0}, {WS_ML:#x}\ns_mov_b64 exec, 3')
        e(f'buffer_store_dwordx4 v[32:35], v11, {sr(R_WS, 4)}, s{sT0} offen sc1')
        e(f's_cmp_lg_u32 s{sROLE}, 1\ns_cbranch_scc1 L_clr2')
        self.ap_base(sT0)
        e('s_mov_b64 exec, 0xffff')
        e(f'buffer_store_dwordx4 v[32:35], v11, {sr(R_WS, 4)}, s{sT0} offen sc1')
        e('L_clr2:')
        e(f's_cmp_lg_u32 s{sROLE}, 2\ns_cbranch_scc1 L_clr3')
        e(f's_lshl_b32 s{sT0}, s{sB}, 16\ns_lshl_b32 s{sT1}, s{sF}, 11\ns_add_u32 s{sT0}, s{sT0}, s{sT1}\ns_add_u32 s{sT0}, s{sT0}, {WS_YP:#x}')
        e('s_mov_b64 exec, -1')
        e(f'buffer_store_dwordx4 v[32:35], v11, {sr(R_WS, 4)}, s{sT0} offen sc1')
        e(f'buffer_store_dwordx4 v[32:35], v11, {sr(R_WS, 4)}, s{sT0} offen offset:1024 sc1')
        e('L_clr3:')
        e('s_mov_b64 exec, 1\ns_waitcnt vmcnt(0)')
        e(f'buffer_atomic_add v{ONE}, off, {sr(R_DBG, 4)}, 0 offset:{DBG_INIT} sc1')
        e('s_mov_b64 exec, -1')
        e('L_cleared:')

        WA, WB, STG = 128, 192, 64
        self.c('epilogue weights -> MFMA fragments in registers')
        e(f's_cmp_eq_u32 s{sROLE}, 0\ns_cbranch_scc1 L_wdone')
        e(f's_cmp_eq_u32 s{sROLE}, 2\ns_cbranch_scc1 L_w12')
        e(f'v_mul_u32_u24 v8, {8 * 896}, v{vG}\nv_lshl_add_u32 v8, v{vN}, 3, v8')
        e(f's_lshl_b32 s{sT0}, s{sHEAD}, 1\ns_add_u32 s{sT0}, s{sT0}, s{sW}\ns_mul_i32 s{sT2}, s{sT0}, {128 * 896}')
        e(f's_lshl_b32 s{sT0}, s{sS}, 7\ns_add_u32 s{sT2}, s{sT2}, s{sT0}\ns_movk_i32 s{sT3}, 896')
        for t in range(4):
            self.rowloads(STG, 8, R_WA, sT2, sT3, 8, wp)
            e(f's_add_u32 s{sT2}, s{sT2}, {24 * 896}\ns_waitcnt vmcnt(0)')
            self.perm(STG, WA + 16 * t, 8)
        e('s_branch L_wdone')
        e('L_w12:')
        e(f'v_mul_u32_u24 v9, {4 * 3584}, v{vG}\nv_lshlrev_b32 v11, 3, v{vN}\nv_lshl_add_u32 v8, v9, 1, v11\nv_add_u32 v9, v9, v11')
        e(f's_mul_i32 s{sT2}, s{sW}, {112 * 3584}\ns_lshl_b32 s{sT0}, s{sF}, 7\ns_add_u32 s{sT2}, s{sT2}, s{sT0}\ns_movk_i32 s{sT3}, 3584')
        for t in range(4):
            ne = 8 if t < 3 else 4
            self.rowloads(STG, 8 if t < 3 else 9, R_WA, sT2, sT3, ne, wp)
            e(f's_add_u32 s{sT2}, s{sT2}, {24 * 3584}\ns_waitcnt vmcnt(0)')
            self.perm(STG, WA + 16 * t, ne)
        e(f'v_mul_u32_u24 v8, {8 * 896}, v{vG}\nv_add_u32 v8, v8, v11\ns_movk_i32 s{sT3}, 896')
        for a in range(2):
            e(f's_mul_i32 s{sT2}, s{sF}, {64 * 896}\ns_lshl_b32 s{sT0}, s{sW}, 8\ns_add_u32 s{sT2}, s{sT2}, s{sT0}')
            if a:
                e(f's_add_u32 s{sT2}, s{sT2}, 128')
            for t in range(2):
                self.rowloads(STG, 8, R_WB, sT2, sT3, 8, wp)
                e(f's_add_u32 s{sT2}, s{sT2}, {24 * 896}\ns_waitcnt vmcnt(0)')
                self.perm(STG, WB + 32 * a + 16 * t, 8)
        e('L_wdone:')
        self.c('wave 0: every workgroup has emptied its slots and the modulation rows are published')
        e(f's_cmp_lg_u32 s{sW}, 0\ns_cbranch_scc1 L_inited')
        lp, dn = self.lab('in'), self.lab('ind')
        e('s_mov_b64 exec, 1')
        e(f'{lp}:\nbuffer_load_dword v32, off, {sr(R_DBG, 4)}, 0 offset:{DBG_INIT} sc1\ns_waitcnt vmcnt(0)')
        e(f'v_readfirstlane_b32 s{sT0}, v32\ns_cmp_ge_u32 s{sT0}, 256\ns_cbranch_scc1 {dn}')
        self.spin_tail(lp, sleep=32)
        e(f'{dn}:\ns_mov_b64 exec, -1')
        e('L_inited:')

        SC, EX, MX, SUM, T1, T2 = 64, 80, 32, 33, 34, 35
        aSC, aML = 8, 9
        CS = f2u(LOG2E / 16)
        e(f's_lshl_b32 s{sT0}, s{sW}, 12\nv_lshl_add_u32 v{aSC}, v0, 4, s{sT0}\nv_lshlrev_b32 v{aML}, 3, v{vI}')
        e(f's_lshl_b32 s{sT2}, s{sBH}, 8\ns_add_u32 s{sT2}, s{sT2}, {WS_ML:#x}')
        e(f's_lshl_b32 s{sT3}, s{sS}, 2\ns_add_u32 s{sT3}, s{sT3}, s{sW}\ns_lshl_b32 s{sT3}, s{sT3}, 3\ns_add_u32 s{sT3}, s{sT3}, s{sT2}')
        e('s_barrier')
        for k in range(4):
            e(f'ds_read_b128 {vr(SC + 4 * k, 4)}, v{aSC} offset:{L_SC + 1024 * k}')
        e('s_waitcnt lgkmcnt(0)')
        for k in range(0, 16, 2):
            self.rnd2(SC + k, SC + k + 1, T1 + ((k >> 1) & 1))
        e(f'v_max3_f32 v{MX}, v{SC}, v{SC + 1}, v{SC + 2}\nv_max3_f32 v{T1}, v{SC + 3}, v{SC + 4}, v{SC + 5}')
        e(f'v_max3_f32 v{MX}, v{MX}, v{SC + 6}, v{SC + 7}\nv_max3_f32 v{T1}, v{T1}, v{SC + 8}, v{SC + 9}')
        e(f'v_max3_f32 v{MX}, v{MX}, v{SC + 10}, v{SC + 11}\nv_max3_f32 v{T1}, v{T1}, v{SC + 12}, v{SC + 13}')
        e(f'v_max3_f32 v{MX}, v{MX}, v{SC + 14}, v{SC + 15}\nv_max_f32 v{MX}, v{MX}, v{T1}')
        self.allred('v_max_f32', [MX], [T1], 64)

        def exps(m):
            for k in range(16):
                e(f'v_sub_f32 v{EX + k}, v{SC + k}, v{m}')
            for k in range(16):
                e(f'v_mul_f32 v{EX + k}, {CS}, v{EX + k}')
            for k in range(16):
                e(f'v_exp_f32 v{EX + k}, v{EX + k}')
        exps(MX)
        e(f'v_add_f32 v{SUM}, v{EX}, v{EX + 1}\nv_add_f32 v{T1}, v{EX + 2}, v{EX + 3}')
        for k in range(4, 16, 2):
            e(f'v_add_f32 v{SUM}, v{SUM}, v{EX + k}\nv_add_f32 v{T1}, v{T1}, v{EX + k + 1}')
        e(f'v_add_f32 v{SUM}, v{SUM}, v{T1}')
        self.allred('v_add_f32', [SUM], [T1], 64)
        e(f'v_min_u32 v{MX}, -2, v{MX}\nv_min_u32 v{SUM}, -2, v{SUM}')
        e(f's_mov_b64 exec, 1\nbuffer_store_dwordx2 {vr(MX, 2)}, off, {sr(R_WS, 4)}, s{sT3} sc1\ns_mov_b64 exec, -1')
        self.poll([(36, f'buffer_load_dwordx2 v[36:37], v{aML}, {sr(R_WS, 4)}, s{sT2} offen sc1')], 2, T1, sleep=2)
        e(f'v_mov_b32 v{MX}, v36')
        self.allred('v_max_f32', [MX], [T1], 32)
        e(f'v_sub_f32 v36, v36, v{MX}\nv_mul_f32 v36, {CS}, v36\nv_exp_f32 v36, v36')
        e(f'v_mul_f32 v{SUM}, v36, v37')
        self.allred('v_add_f32', [SUM], [T1], 32)
        e(f'v_rcp_f32 v{SUM}, v{SUM}')
        exps(MX)
        for k in range(16):
            e(f'v_mul_f32 v{EX + k}, v{EX + k}, v{SUM}')
        for k in range(16):
            e(f'v_cvt_pk_bf16_f32 v{EX + k}, v{EX + k}, v{EX + k}')
        for k in range(4):
            e(f'ds_write_b128 v{aSC}, {vr(EX + 4 * k, 4)} offset:{L_SC + 1024 * k}')
        e('s_waitcnt lgkmcnt(0)')
        self.stamp(6)
        e('s_barrier')
        e(f's_cmp_eq_u32 s{sROLE}, 0\ns_cbranch_scc1 L_service_done')
        e(f's_cmp_eq_u32 s{sROLE}, 2\ns_cbranch_scc1 L_stage2')

        G0, AF, ACC = 64, 80, 96
        aG, aAw, aAr, aAr2, aRw, aRr = 8, 9, 10, 12, 13, 14
        e(f'v_lshlrev_b32 v{aG}, 3, v0')
        e(f's_lshr_b32 s{sT0}, s{sW}, 1\ns_add_u32 s{sT0}, s{sT0}, s{sBH}\ns_lshl_b32 s{sT0}, s{sT0}, 13')
        e(f's_and_b32 s{sT1}, s{sW}, 1\ns_lshl_b32 s{sT1}, s{sT1}, 9\ns_add_u32 s{sT0}, s{sT0}, s{sT1}')
        e(f's_add_u32 s22, s{sT0}, {WS_OP:#x}\ns_add_u32 s23, s22, 0x1000')
        e(f's_lshl_b32 s{sT0}, s{sW}, 9\nv_lshl_add_u32 v{aAw}, v0, 2, s{sT0}\nv_lshl_add_u32 v{aAr}, v{vG}, 4, s{sT0}')
        e(f'v_lshl_add_u32 v{aRw}, v{vN}, 4, s{sT0}\nv_lshlrev_b32 v{aRr}, 4, v{vN}')
        self.ap_base(24)
        e('s_barrier')
        self.stamp(7)
        self.poll([(G0 + 2 * z, f'buffer_load_dwordx2 {vr(G0 + 2 * z, 2)}, v{aG}, {sr(R_WS, 4)}, s{22 + (z >> 2)} offen offset:{1024 * (z & 3)} sc1')
                   for z in range(8)], 2, 32)
        self.stamp(8)
        self.sum8(G0)
        e(f'v_cvt_pk_bf16_f32 v32, v{G0}, v{G0 + 1}\nds_write_b32 v{aAw}, v32 offset:{L_ACT}')
        for t in range(4):
            e(f'ds_read_b128 {vr(AF + 4 * t, 4)}, v{aAr} offset:{L_ACT + 64 * t}')
        e('s_waitcnt lgkmcnt(0)')
        for t in range(4):
            self.mfma4(ACC, AF + 4 * t, WA + 16 * t, 8, t == 0)
        for c in range(1, 4):
            e(f'v_mov_b32 v{ACC + c}, v{ACC + 4 * c}')
        e(f'ds_write_b128 v{aRw}, {vr(ACC, 4)} offset:{L_RED}\ns_waitcnt lgkmcnt(0)\ns_barrier')
        e(f's_cmp_lg_u32 s{sW}, 0\ns_cbranch_scc1 L_service_done')
        for w in range(4):
            e(f'ds_read_b128 {vr(32 + 4 * w, 4)}, v{aRr} offset:{L_RED + 512 * w}')
        e('s_waitcnt lgkmcnt(0)')
        for r in range(4):
            e(f'v_add_f32 v{32 + r}, v{32 + r}, v{36 + r}\nv_add_f32 v{40 + r}, v{40 + r}, v{44 + r}')
        for r in range(4):
            e(f'v_add_f32 v{32 + r}, v{32 + r}, v{40 + r}')
        for r in range(4):
            e(f'v_min_u32 v{32 + r}, -2, v{32 + r}')
        e('s_mov_b64 exec, 0xffff')
        e(f'buffer_store_dwordx4 v[32:35], v{aRr}, {sr(R_WS, 4)}, s24 offen sc1')
        self.stamp(9)
        e('s_branch L_service_done')

        e('L_stage2:')
        GA, SB, CB, XX, GB = 16, 18, 20, 22, 24
        aUw, aUr, aY, aX1w, aX1r, aST, aPRE, aY3, aO3 = 15, 25, 26, 27, 28, 29, 30, 31, 11
        self.c('lane < 56: columns 112w + 2*lane; lanes 56..63 repeat columns 0,1')
        e(f's_mul_i32 s{sT0}, s{sW}, 448\nv_lshl_add_u32 v{aG}, v0, 3, s{sT0}\nv_cmp_gt_u32 vcc, 56, v0\nv_cndmask_b32 v{aG}, 0, v{aG}, vcc')
        e(f's_lshl_b32 s{sT0}, s{sB}, 13\ns_add_u32 s{sT0}, s{sT0}, {WS_M2:#x}')
        e(f'buffer_load_dwordx2 {vr(GA, 2)}, v{aG}, {sr(R_WS, 4)}, s{sT0} offen sc1')
        e(f'buffer_load_dwordx2 {vr(SB, 2)}, v{aG}, {sr(R_WS, 4)}, s{sT0} offen offset:1792 sc1')
        e(f'buffer_load_dwordx2 {vr(CB, 2)}, v{aG}, {sr(R_WS, 4)}, s{sT0} offen offset:3584 sc1')
        e(f's_lshl_b32 s{sT1}, s{sF}, 6\nv_lshl_add_u32 v{aX1r}, v{vN}, 2, s{sT1}\ns_add_u32 s{sT0}, s{sT0}, 5376')
        e(f'buffer_load_dword v{GB}, v{aX1r}, {sr(R_WS, 4)}, s{sT0} offen sc1')
        e(f'v_lshrrev_b32 v32, 1, v{aG}\ns_mul_i32 s{sT0}, s{sB}, 896')
        e(f'buffer_load_dword v{XX}, v32, {sr(R_X, 4)}, s{sT0} offen')
        e(f'v_lshrrev_b32 v{aO3}, 1, v{aX1r}\nv_add_u32 v{aO3}, s{sT0}, v{aO3}')
        e(f'v_lshl_add_u32 v{aY3}, v{vG}, 11, v{aX1r}')
        e(f's_lshl_b32 s{sT0}, s{sW}, 9\nv_lshl_add_u32 v{aAw}, v0, 2, s{sT0}\nv_lshl_add_u32 v{aAr}, v{vG}, 4, s{sT0}')
        e(f'v_lshl_add_u32 v{aAr2}, v{vG}, 3, s{sT0}\nv_lshl_add_u32 v{aRw}, v{vN}, 4, s{sT0}\nv_lshlrev_b32 v{aRr}, 2, v0')
        e(f'v_add_u32 v{aRr}, {L_RED}, v{aRr}')
        e(f'v_lshl_add_u32 v{aY}, v{vI}, 4, s{sT0}')
        e(f's_lshl_b32 s{sT0}, s{sW}, 7\nv_lshl_add_u32 v{aUw}, v0, 1, s{sT0}\nv_lshl_add_u32 v{aUr}, v{vG}, 4, s{sT0}')
        e(f's_lshl_b32 s{sT0}, s{sW}, 3\nv_mov_b32 v{aST}, s{sT0}\nv_mov_b32 v5, 0')
        e(f'v_lshlrev_b32 v{aPRE}, 10, v{vI}')
        e(f's_lshl_b32 s{sT0}, s{sB}, 17\ns_lshl_b32 s{sT1}, s{sW}, 15\ns_add_u32 s{sT0}, s{sT0}, s{sT1}\ns_add_u32 s26, s{sT0}, {WS_OP:#x}')
        e(f's_lshl_b32 s{sT0}, s{sB}, 14\ns_add_u32 s22, s{sT0}, {WS_AP:#x}\ns_add_u32 s23, s22, 0x1000\ns_add_u32 s24, s23, 0x1000\ns_add_u32 s25, s24, 0x1000')
        e(f's_lshl_b32 s{sT0}, s{sB}, 16\ns_add_u32 s28, s{sT0}, {WS_YP:#x}\ns_lshl_b32 s{sT1}, s{sF}, 11\ns_add_u32 s27, s28, s{sT1}')
        e(f's_cmp_eq_u32 s{sW}, 3\ns_cselect_b32 s29, 0xffff, -1')
        for k in range(7):
            e(f's_add_u32 s{36 + k}, s28, {8192 * k}')
        e('s_mov_b32 s48, -1\ns_mov_b32 s49, 0x00ffffff\ns_mov_b32 s50, 0xffff0000\ns_mov_b32 s51, 0')
        e('s_waitcnt vmcnt(0)')
        e(f'v_and_b32 v{XX + 1}, 0xffff0000, v{XX}\nv_lshlrev_b32 v{XX}, 16, v{XX}')
        e(f'v_add_f32 v{CB}, 1.0, v{CB}\nv_add_f32 v{CB + 1}, 1.0, v{CB + 1}')
        self.rnd2(CB, CB + 1, 32)
        e('s_barrier')
        self.stamp(7)
        self.poll([(32, f'buffer_load_dword v32, v{aPRE}, {sr(R_WS, 4)}, s26 offen sc1')], 1, 33, sleep=2)
        self.poll([(G0 + 2 * z, f'buffer_load_dwordx2 {vr(G0 + 2 * z, 2)}, v{aG}, {sr(R_WS, 4)}, s{22 + (z >> 1)} offen offset:{2048 * (z & 1)} sc1')
                   for z in range(8)], 2, 32)
        self.stamp(8)
        self.sum8(G0)
        X1, D0, S1, S2, MEAN, RINV = 34, 36, 38, 39, 40, 41
        self.rnd2(G0, G0 + 1, 32)
        e(f'v_mul_f32 v{G0}, v{G0}, v{GA}\nv_mul_f32 v{G0 + 1}, v{G0 + 1}, v{GA + 1}')
        self.rnd2(G0, G0 + 1, 32)
        e(f'v_add_f32 v{X1}, v{G0}, v{XX}\nv_add_f32 v{X1 + 1}, v{G0 + 1}, v{XX + 1}')
        self.rnd2(X1, X1 + 1, 32)
        e(f'v_readlane_b32 s{sT0}, v{X1}, 56')
        e(f'ds_write_b64 v{aG}, {vr(X1, 2)} offset:{L_X1}')
        e(f'v_subrev_f32 v{D0}, s{sT0}, v{X1}\nv_subrev_f32 v{D0 + 1}, s{sT0}, v{X1 + 1}')
        e(f'v_cndmask_b32 v{D0 + 1}, 0, v{D0 + 1}, s[48:49]')
        e(f'v_add_f32 v{S1}, v{D0}, v{D0 + 1}\nv_mul_f32 v{S2}, v{D0}, v{D0}\nv_fmac_f32 v{S2}, v{D0 + 1}, v{D0 + 1}')
        self.allred('v_add_f32', [S1, S2], [32, 33], 64)
        e(f'ds_write_b64 v{aST}, {vr(S1, 2)} offset:{L_STAT}\ns_waitcnt lgkmcnt(0)\ns_barrier')
        e(f'ds_read_b128 v[44:47], v5 offset:{L_STAT}\nds_read_b128 v[48:51], v5 offset:{L_STAT + 16}\ns_waitcnt lgkmcnt(0)')
        e('v_add_f32 v44, v44, v46\nv_add_f32 v45, v45, v47\nv_add_f32 v48, v48, v50\nv_add_f32 v49, v49, v51')
        e(f'v_add_f32 v{S1}, v44, v48\nv_add_f32 v{S2}, v45, v49')
        e(f'v_mov_b32 v44, s{sT0}\nv_fmamk_f32 v44, v44, {f2u(448.0)}, v{S1}')
        self.div448(MEAN, 44, 45)
        e(f'v_mul_f32 v46, {f2u(-1 / 448)}, v{S1}\nv_fmac_f32 v{S2}, v46, v{S1}\nv_mul_f32 v{RINV}, {f2u(1 / 448)}, v{S2}\nv_max_f32 v{RINV}, 0, v{RINV}')
        self.rnd2(MEAN, RINV, 32)
        e(f'v_add_f32 v{RINV}, {f2u(1e-5)}, v{RINV}')
        e(f'v_sub_f32 v{D0}, v{X1}, v{MEAN}\nv_sub_f32 v{D0 + 1}, v{X1 + 1}, v{MEAN}')
        self.rnd(RINV, RINV)
        e(f'v_sqrt_f32 v{RINV}, v{RINV}')
        self.rnd2(D0, D0 + 1, 32)
        self.rnd(RINV, RINV)
        e(f'v_rcp_f32 v{RINV}, v{RINV}')
        e(f'v_mul_f32 v{D0}, v{D0}, v{RINV}\nv_mul_f32 v{D0 + 1}, v{D0 + 1}, v{RINV}')
        self.rnd2(D0, D0 + 1, 32)
        e(f'v_mul_f32 v{D0}, v{D0}, v{CB}\nv_mul_f32 v{D0 + 1}, v{D0 + 1}, v{CB + 1}')
        self.rnd2(D0, D0 + 1, 32)
        e(f'v_add_f32 v{D0}, v{D0}, v{SB}\nv_add_f32 v{D0 + 1}, v{D0 + 1}, v{SB + 1}')
        e(f'v_cvt_pk_bf16_f32 v32, v{D0}, v{D0 + 1}\nds_write_b32 v{aAw}, v32 offset:{L_ACT}')
        for t in range(3):
            e(f'ds_read_b128 {vr(AF + 4 * t, 4)}, v{aAr} offset:{L_ACT + 64 * t}')
        e(f'ds_read_b64 {vr(AF + 12, 2)}, v{aAr2} offset:{L_ACT + 192}')
        e(f'ds_read_b32 v{X1}, v{aX1r} offset:{L_X1}')
        e('s_waitcnt lgkmcnt(0)')
        for t in range(4):
            self.mfma4(ACC, AF + 4 * t, WA + 16 * t, 8 if t < 3 else 4, t == 0)
        for c in range(1, 4):
            e(f'v_mov_b32 v{ACC + c}, v{ACC + 4 * c}')
        e(f'ds_write_b128 v{aRw}, {vr(ACC, 4)} offset:{L_RED}\ns_waitcnt lgkmcnt(0)\ns_barrier')
        e(f'ds_read2st64_b32 v[44:45], v{aRr} offset0:0 offset1:2\nds_read2st64_b32 v[46:47], v{aRr} offset0:4 offset1:6\ns_waitcnt lgkmcnt(0)')
        e('v_add_f32 v44, v44, v45\nv_add_f32 v46, v46, v47\nv_add_f32 v44, v44, v46')
        self.rnd(44, 44)
        self.silu([44], [45])
        e(f'v_cvt_pk_bf16_f32 v44, v44, v44\nds_write_b16 v{aUw}, v44 offset:{L_H}')
        e(f'ds_read_b128 {vr(AF, 4)}, v{aUr} offset:{L_H}\nds_read_b128 {vr(AF + 4, 4)}, v{aUr} offset:{L_H + 64}\ns_waitcnt lgkmcnt(0)')
        for t in range(2):
            for a in range(2):
                self.mfma4(ACC + 16 * a, AF + 4 * t, WB + 32 * a + 16 * t, 8, t == 0)
        for c in range(4):
            e(f'v_cndmask_b32 v{44 + c}, v{ACC + 4 * c}, v{ACC + 16 + 4 * c}, s[50:51]')
        for c in range(4):
            e(f'v_min_u32 v{44 + c}, -2, v{44 + c}')
        e(f's_mov_b32 exec_lo, s29\ns_mov_b32 exec_hi, 0')
        e(f'buffer_store_dwordx4 v[44:47], v{aY}, {sr(R_WS, 4)}, s27 offen sc1')
        e('s_mov_b64 exec, -1')
        self.stamp(1)
        e(f's_cmp_lg_u32 s{sW}, 0\ns_cbranch_scc1 L_service_done')

        self.poll([(G0 + k, f'buffer_load_dword v{G0 + k}, v{aY3}, {sr(R_WS, 4)}, s{36 + k} offen sc1') for k in range(7)], 1, 32)
        e(f'v_add_f32 v{G0}, v{G0}, v{G0 + 1}\nv_add_f32 v{G0 + 2}, v{G0 + 2}, v{G0 + 3}\nv_add_f32 v{G0 + 4}, v{G0 + 4}, v{G0 + 5}')
        e(f'v_add_f32 v{G0}, v{G0}, v{G0 + 2}\nv_add_f32 v{G0 + 4}, v{G0 + 4}, v{G0 + 6}\nv_add_f32 v{G0}, v{G0}, v{G0 + 4}')
        self.rowred('v_add_f32', [G0], [32], 64)
        self.rnd(G0, G0)
        e(f'v_mul_f32 v{G0}, v{G0}, v{GB}')
        self.rnd(G0, G0)
        e(f'v_add_f32 v{G0}, v{G0}, v{X1}\nv_cvt_pk_bf16_f32 v{G0}, v{G0}, v{G0}')
        e(f's_mov_b64 exec, 0xffff\nbuffer_store_short v{G0}, v{aO3}, {sr(R_OUT, 4)}, 0 offen')
        self.stamp(9)
        e('L_service_done:')
        self.stamp_flush(0)
        e('L_end:')
        e('s_endpgm')

    def ap_base(self, d):
        e = self.e
        e(f's_lshr_b32 s{d}, s{sBH}, 1\ns_lshl_b32 s{d}, s{d}, 11\ns_lshl_b32 s{sT1}, s{sS}, 8')
        e(f's_add_u32 s{d}, s{d}, s{sT1}\ns_add_u32 s{d}, s{d}, {WS_AP:#x}')

    def sum8(self, g):
        e = self.e
        for st in (2, 4, 8):
            for z in range(0, 16, 2 * st):
                e(f'v_add_f32 v{g + z}, v{g + z}, v{g + z + st}\nv_add_f32 v{g + z + 1}, v{g + z + 1}, v{g + z + st + 1}')

    def build(self):
        self.entry()
        self.stream()
        self.service()
        lines, n = hazard.fix(self.L)
        ref = open(os.path.join(os.path.dirname(os.path.abspath(__file__)), 'head.txt')).read()
        txt = ref + f'; @launch grid=(256,1,1) block=(512,1,1) lds={LDS_BYTES}\n'
        txt += f'.amdgcn_target "amdgcn-amd-amdhsa--gfx950"\n.text\n.globl {KERNEL}\n.p2align 8\n.type {KERNEL},@function\n{KERNEL}:\n'
        txt += '\n'.join(lines) + '\n'
        txt += f'''.section .rodata,"a"
.p2align 6
.amdhsa_kernel {KERNEL}
  .amdhsa_next_free_vgpr 256
  .amdhsa_next_free_sgpr 102
  .amdhsa_accum_offset 256
  .amdhsa_group_segment_fixed_size 0
  .amdhsa_kernarg_size 104
  .amdhsa_user_sgpr_count 2
  .amdhsa_user_sgpr_kernarg_segment_ptr 1
  .amdhsa_system_sgpr_workgroup_id_x 1
.end_amdhsa_kernel
'''
        return txt


if __name__ == '__main__':
    out = sys.argv[1]
    opts = eval('dict(' + (sys.argv[2] if len(sys.argv) > 2 else '') + ')')
    open(out, 'w').write(Gen(**opts).build())
```

```python
import sys, os, struct
sys.path.insert(0, os.path.dirname(os.path.abspath(__file__)))
import hazard

NAME = 'adaLN_cond__mha_block_cached__dense_activation_silu__decode'
KERNEL = NAME + '_kernel'

WS_MA, WS_QA, WS_EP, WS_ML, WS_OP, WS_AP, WS_YP, WS_ST = 0x0, 0x80000, 0x88000, 0x90000, 0x100000, 0x140000, 0x160000, 0x200000
ML_STRIDE = 4352
WS_SIZE = 0x400000
L_SC, L_Q, L_CNT, L_O, L_RED, L_ACT, L_H, L_X1, L_STAT = 0, 16384, 16896, 17408, 21504, 25600, 27648, 28160, 30208
L_EXT = 32768

sS, sBH, sB, sHEAD, sW, sJ = 30, 31, 32, 33, 34, 35
R_K, R_V, R_WS = 36, 40, 44
R_WMOD, R_WQ, R_C, R_X, R_DBG, R_WA, R_WB, R_OUT = 36, 40, 48, 52, 56, 60, 64, 68
sPLO, sPHI, sSPIN = 72, 73, 74
sT0, sT1, sT2, sT3, sT4 = 56, 57, 58, 59, 75
STAMP0 = 76
sG, sE, sTAG = 3, 100, 101
DPPM = 'row_mask:0xf bank_mask:0xf'


def f2u(x):
    return '0x%08x' % struct.unpack('<I', struct.pack('<f', x))[0]


LOG2E = 1.4426950408889634


def vr(a, n):
    return f'v[{a}:{a + n - 1}]' if n > 1 else f'v{a}'


def sr(a, n):
    return f's[{a}:{a + n - 1}]'


class Gen:
    def __init__(self, **o):
        self.o = dict(fl=(5,), fl2=8, tail=64, ring=48, diag=False, wpol='nt', ppol='nt', fl0=5, flb=6, ext=(32, 32), hold=(1, 4), pdepth=3, kvpol='nt', spin=1 << 20,
                      resv=4, cbud=8, nb=40, off='', wdepth=2, asleep=4, adelay=0, qdelay=0, qsleep=12, mlsleep=8)
        self.o.update(o)
        self.L = []
        self.uid = 0

    def e(self, s):
        for x in s.split('\n'):
            x = x.strip()
            if x:
                self.L.append(x if x.endswith(':') else '    ' + x)

    def c(self, s):
        self.L.append('    ; ' + s)

    def lab(self, p):
        self.uid += 1
        return f'L_{p}_{self.uid}'

    def srd(self, r, p, size):
        self.e(f's_mov_b32 s{r}, s{p}\ns_mov_b32 s{r+1}, s{p+1}\ns_mov_b32 s{r+2}, {size:#x}\ns_mov_b32 s{r+3}, 0x20000')

    def stamp(self, k, mode=0):
        if self.o['diag'] and mode in (0, self.o['diag']):
            self.e(f's_memrealtime {sr(STAMP0 + 2 * k, 2)}')

    def stamp_init(self):
        if self.o['diag']:
            for k in range(10):
                self.e(f's_mov_b32 s{STAMP0 + 2 * k}, 0')

    def stamp_flush(self, wave_base):
        if not self.o['diag']:
            return
        e = self.e
        e('s_mov_b64 exec, -1\ns_waitcnt lgkmcnt(0)\nv_mov_b32 v5, 0')
        for k in range(10):
            e(f'v_writelane_b32 v5, s{STAMP0 + 2 * k}, {k}')
        e(f's_lshl_b32 s{sT0}, s2, 3\ns_add_u32 s{sT0}, s{sT0}, s{sW}\ns_add_u32 s{sT0}, s{sT0}, {wave_base}')
        e(f's_lshl_b32 s{sT0}, s{sT0}, 6\ns_add_u32 s{sT0}, s{sT0}, {WS_ST:#x}')
        e('v_lshlrev_b32 v6, 2, v0\ns_mov_b64 exec, 0xffff')
        e(f'buffer_store_dword v5, v6, {sr(R_WS, 4)}, s{sT0} offen')

    def spin_tail(self, loop, sleep=0):
        if sleep:
            self.e(f's_sleep {sleep}')
        self.e(f's_sub_u32 s{sSPIN}, s{sSPIN}, 1\ns_cmp_gt_i32 s{sSPIN}, 0\ns_cbranch_scc1 {loop}')

    def rnd(self, d, s):
        self.e(f'v_cvt_pk_bf16_f32 v{d}, v{s}, v{s}\nv_and_b32 v{d}, 0xffff0000, v{d}')

    def rnd2(self, a, b, t):
        self.e(f'v_cvt_pk_bf16_f32 v{t}, v{a}, v{b}\nv_lshlrev_b32 v{a}, 16, v{t}\nv_and_b32 v{b}, 0xffff0000, v{t}')

    def allred(self, op, regs, tmps, width):
        for sh in (8, 4, 2, 1):
            for r in regs:
                self.e(f'{op}_dpp v{r}, v{r}, v{r} row_ror:{sh} {DPPM}')
        self.rowred(op, regs, tmps, width)

    def rowred(self, op, regs, tmps, width):
        for sw in ((16,) if width == 32 else (16, 32)):
            for r, t in zip(regs, tmps):
                self.e(f'v_mov_b32 v{t}, v{r}')
            for r, t in zip(regs, tmps):
                self.e(f'v_permlane{sw}_swap_b32 v{r}, v{t}')
            for r, t in zip(regs, tmps):
                self.e(f'{op} v{r}, v{r}, v{t}')

    def div448(self, d, s, t):
        self.e(f'v_mul_f32 v{d}, {f2u(1 / 448)}, v{s}')
        self.e(f'v_fmamk_f32 v{t}, v{d}, {f2u(-448.0)}, v{s}')
        self.e(f'v_fmac_f32 v{d}, {f2u(1 / 448)}, v{t}')

    def silu(self, regs, tmps):
        e = self.e
        for r, t in zip(regs, tmps):
            e(f'v_mul_f32 v{t}, {f2u(-LOG2E)}, v{r}')
        for r, t in zip(regs, tmps):
            e(f'v_exp_f32 v{t}, v{t}')
        for r, t in zip(regs, tmps):
            e(f'v_add_f32 v{t}, 1.0, v{t}')
        for r, t in zip(regs, tmps):
            e(f'v_rcp_f32 v{t}, v{t}')
        for r, t in zip(regs, tmps):
            e(f'v_mul_f32 v{r}, v{r}, v{t}')

    def perm(self, raw, frag, ne):
        h = ne // 2
        for c in range(4):
            for r in range(h):
                x = raw + 4 * r + (c >> 1)
                y = x + 2
                self.e(f'v_perm_b32 v{frag + c * h + r}, v{y}, v{x}, s{sPHI if c & 1 else sPLO}')

    def mfma4(self, acc, a, frag, ne, first):
        h = ne // 2
        op = 'v_mfma_f32_16x16x32_bf16' if ne == 8 else 'v_mfma_f32_16x16x16_bf16'
        for c in range(4):
            d = vr(acc + 4 * c, 4)
            self.e(f'{op} {d}, {vr(a, h)}, {vr(frag + c * h, h)}, {"0" if first else d}')

    def rowloads(self, raw, voff, srd, soff, sstride, ne, pol, depth=0):
        for k in range(ne):
            if depth:
                self.e(f's_waitcnt vmcnt({depth - 1})')
            self.e(f'buffer_load_dwordx2 {vr(raw + 2 * k, 2)}, v{voff}, {sr(srd, 4)}, s{soff} offen {pol}')
            self.e(f's_add_u32 s{soff}, s{soff}, s{sstride}')

    def tagpoll(self, loads, tags, sleep=0, first=None):
        e = self.e
        lp, dn = self.lab('tp'), self.lab('tpd')
        e(first or loads)
        e(f'{lp}:\ns_waitcnt vmcnt(0)')
        for i, t in enumerate(tags):
            e(f'v_cmp_ne_u32 {sr(4 + 2 * i, 2)}, s{sTAG}, v{t}')
        e(f's_or_b64 vcc, s[4:5], {sr(4 + 2 * (len(tags) - 1), 2)}')
        for i in range(1, len(tags) - 1):
            e(f's_or_b64 vcc, vcc, {sr(4 + 2 * i, 2)}')
        e(f's_cbranch_scc0 {dn}')
        if sleep:
            e(f's_sleep {sleep}')
        e(loads)
        self.spin_tail(lp)
        e(f's_waitcnt vmcnt(0)\n{dn}:')

    def ldswait(self, areg, off, target, tmp, sleep=0):
        e = self.e
        lp, dn = self.lab('sy'), self.lab('syd')
        e(f'{lp}:\nds_read_b32 v{tmp}, v{areg} offset:{off}\ns_waitcnt lgkmcnt(0)\nv_readfirstlane_b32 s{sT0}, v{tmp}')
        e(f's_cmp_ge_u32 s{sT0}, {target}\ns_cbranch_scc1 {dn}')
        self.spin_tail(lp, sleep)
        e(f'{dn}:')

    def poll(self, loads, nreg, tmp, sleep=0, lasthalf=False):
        e = self.e
        lp, dn = self.lab('poll'), self.lab('polled')
        for i, (d, t) in enumerate(loads):
            if lasthalf and i == len(loads) - 1:
                e(f's_mov_b32 exec_hi, 0\n{t}\ns_mov_b32 exec_hi, -1')
            else:
                e(t)
        e(f'{lp}:')
        e('s_waitcnt vmcnt(0)')
        for i, (d, t) in enumerate(loads):
            src = d
            if nreg == 2:
                e(f'v_max_u32 v{tmp + (i & 1)}, v{d}, v{d + 1}')
                src = tmp + (i & 1)
            if nreg == 4:
                e(f'v_max3_u32 v{tmp + (i & 1)}, v{d}, v{d + 1}, v{d + 2}\nv_max_u32 v{tmp + (i & 1)}, v{tmp + (i & 1)}, v{d + 3}')
                src = tmp + (i & 1)
            e(f'v_cmp_eq_u32 {sr(4 + 2 * i, 2)}, -1, v{src}')
        e(f's_mov_b64 vcc, {sr(4, 2)}')
        for i in range(1, len(loads)):
            e(f's_or_b64 vcc, vcc, {sr(4 + 2 * i, 2)}')
        e(f's_cmp_eq_u64 vcc, 0\ns_cbranch_scc1 {dn}')
        if sleep:
            e(f's_sleep {sleep}')
        for i, (d, t) in enumerate(loads):
            e(f's_mov_b64 exec, {sr(4 + 2 * i, 2)}')
            e(t)
        e('s_mov_b64 exec, -1')
        self.spin_tail(lp)
        e('s_waitcnt vmcnt(0)')
        e(f'{dn}:')

    def entry(self):
        e = self.e
        e('s_cmp_ge_u32 s2, 256\ns_cbranch_scc1 L_end')
        e('s_load_dwordx16 s[4:19], s[0:1], 0\ns_load_dwordx8 s[20:27], s[0:1], 64\ns_load_dwordx2 s[28:29], s[0:1], 96')
        self.stamp_init()
        self.stamp(0)
        e(f'v_lshrrev_b32 v1, 6, v0\nv_and_b32 v0, 63, v0\nv_readfirstlane_b32 s{sW}, v1')
        e(f'v_mov_b32 v2, {L_CNT}\nv_mov_b32 v4, 0\nv_mov_b32 v5, 0\nv_mov_b32 v6, 0\nv_mov_b32 v7, 0\nds_write_b128 v2, v[4:7]')
        e(f's_and_b32 s{sS}, s2, 7\ns_lshr_b32 s{sBH}, s2, 3\ns_lshr_b32 s{sB}, s2, 7\ns_and_b32 s{sHEAD}, s{sBH}, 15')
        e('v_lshrrev_b32 v1, 4, v0\nv_and_b32 v2, 15, v0')
        sU = 35
        self.c('prologue role sG: 1 shift, 4 scale, 2 gate columns of w_mod, 3 columns of wq, 0 none; sU = 32-column block')
        e(f's_lshr_b32 s{sT0}, s{sBH}, 1\ns_lshl_b32 s{sT0}, s{sT0}, 3\ns_add_u32 s{sT0}, s{sT0}, s{sS}\ns_sub_u32 s{sT1}, s{sT0}, 48')
        e(f's_cmp_lt_u32 s{sT0}, 42\ns_cselect_b32 s{sG}, 2, 0\ns_cmp_lt_u32 s{sT0}, 14\ns_cselect_b32 s{sG}, 4, s{sG}')
        e(f's_cmp_lt_u32 s{sT0}, 7\ns_cselect_b32 s{sG}, 1, s{sG}\ns_movk_i32 s{sT2}, 0x2000')
        e(f's_cmp_lt_u32 s{sT1}, 64\ns_cselect_b32 s{sG}, 3, s{sG}\ns_cselect_b32 s{sT0}, s{sT1}, s{sT0}\ns_cselect_b32 s{sT3}, s{sT2}, 5376')
        e(f's_and_b32 s{sT1}, s{sBH}, 1\ns_lshl_b32 s{sU}, s{sT0}, 1\ns_add_u32 s{sU}, s{sU}, s{sT1}')
        if set('SP') & set(self.o['off']):
            e(f's_mov_b32 s{sG}, 0')
        e(f's_cmp_lt_u32 s{sW}, 4\ns_cbranch_scc1 L_service')

    def stream(self):
        e, o = self.e, self.o
        RING, fl, fl2 = o['ring'], o['fl'], o['fl2']
        D = max(fl)
        vK, vV, vSW, vPR = 3, 4, 5, 6
        ACC, T0, T1, PC, PN, MSK, AB, QB, RB = 8, 16, 17, 18, 19, 20, 24, 32, 64
        sOFF, sCNT, sM, sSTEP = 48, 49, 50, 60
        N = 512
        e(f's_sub_u32 s{sW}, s{sW}, 4')
        e('s_setprio 2')
        self.c('K lane offset: key = n>>2, chunk = (n&3) + 4g')
        e(f'v_lshrrev_b32 v7, 2, v2\nv_and_b32 v8, 3, v2\nv_lshl_add_u32 v8, v1, 2, v8\nv_lshlrev_b32 v8, 4, v8')
        e(f'v_lshl_add_u32 v{vK}, v7, 9, v8')
        e(f's_lshl_b32 s{sOFF}, s2, 21\ns_lshl_b32 s{sCNT}, s{sW}, 11\ns_add_u32 s{sOFF}, s{sOFF}, s{sCNT}')
        e(f's_mov_b32 s61, s{sOFF}\ns_movk_i32 s{sSTEP}, 0x2000')
        e('s_waitcnt lgkmcnt(0)')
        self.stamp(3, 2)
        self.srd(R_K, 6, 512 << 20)
        self.srd(R_WS, 28, WS_SIZE)
        self.c('wave 3 marks the slots this workgroup fills at the end as empty')
        e(f's_cmp_lg_u32 s{sW}, {9 if "S" in o["off"] else 3}\ns_cbranch_scc1 L_cleared')
        e(f'v_mov_b32 v24, -1\nv_mov_b32 v25, -1\nv_mov_b32 v26, -1\nv_mov_b32 v27, -1\nv_lshlrev_b32 v11, 4, v0')
        e(f's_lshl_b32 s{sT0}, s2, 10\ns_add_u32 s{sT0}, s{sT0}, {WS_OP:#x}')
        e(f'buffer_store_dwordx4 v[24:27], v11, {sr(R_WS, 4)}, s{sT0} offen sc1')
        e(f's_bitcmp1_b32 s{sHEAD}, 0\ns_cbranch_scc0 L_clr1')
        e(f's_lshr_b32 s{sT1}, s{sHEAD}, 1\ns_lshl_b32 s{sT1}, s{sT1}, 3\ns_add_u32 s{sT1}, s{sT1}, s{sS}\ns_cmp_lt_u32 s{sT1}, 28\ns_cbranch_scc0 L_cleared')
        e(f's_lshl_b32 s{sT0}, s{sB}, 16\ns_lshl_b32 s{sT1}, s{sT1}, 11\ns_add_u32 s{sT0}, s{sT0}, s{sT1}\ns_add_u32 s{sT0}, s{sT0}, {WS_YP:#x}')
        e(f'buffer_store_dwordx4 v[24:27], v11, {sr(R_WS, 4)}, s{sT0} offen sc1')
        e(f'buffer_store_dwordx4 v[24:27], v11, {sr(R_WS, 4)}, s{sT0} offen offset:768 sc1')
        e('s_branch L_cleared\nL_clr1:')
        e(f's_cmp_lt_u32 s{sS}, 7\ns_cbranch_scc0 L_cleared')
        self.ap_base(sT0)
        e(f'v_lshlrev_b32 v11, 4, v2\nv_lshl_add_u32 v11, v1, 15, v11')
        e(f'buffer_store_dwordx4 v[24:27], v11, {sr(R_WS, 4)}, s{sT0} offen sc1')
        e('L_cleared:')
        e('s_barrier')
        self.stamp(4, 2)
        st = dict(L=0, P=0, lds=0)
        pend = []

        EXT = o['ext']
        vEXT, sEXT = 7, 62

        def inlds(G):
            return RING <= G % N < RING + EXT[G // N]

        def reg(G):
            q = G % N
            if inlds(G):
                return RB + 4 * (q - 32)
            return RB + 4 * (q if q < RING else q % 16)

        def load(f=None):
            G = st['L']
            if G == N:
                e(f's_mov_b32 s{sOFF}, s61')
            if f is None:
                f = fl[G % len(fl)]
            e(f's_waitcnt vmcnt({f - 1})')
            st['landed'] = max(st.get('landed', 0), G - (f - 1))
            isV = G >= N
            srd = sr(R_V if isV else R_K, 4)
            if inlds(G):
                e(f's_add_u32 m0, s{sEXT}, {1024 * (G % N - RING) - 256 * (G & 1)}')
                e(f'buffer_load_dwordx4 v{vV if isV else vK}, {srd}, s{sOFF} offen offset:{256 * (G & 1)} {o["kvpol"]} lds')
            else:
                for G2 in range(st['P'], G):
                    assert reg(G2) != reg(G), (G, G2)
                e(f'buffer_load_dwordx4 {vr(reg(G), 4)}, v{vV if isV else vK}, {srd}, s{sOFF} offen offset:{256 * (G & 1)} {o["kvpol"]}')
            if G & 1:
                e(f's_add_u32 s{sOFF}, s{sOFF}, s{sSTEP}')
            st['L'] = G + 1

        def aprep(m):
            for r in range(4):
                e(f'v_and_b32_dpp v{AB + 4 * (m & 1) + r}, v{PC}, v{MSK + r} row_newbcast:{m & 15} {DPPM}')

        def proc():
            G = st['P']
            assert G < st['landed'], (G, st)
            q = G % N
            G2 = G + 8
            if inlds(G2):
                assert G2 < st['landed'], (G2, st)
                e(f'ds_read_b128 {vr(reg(G2), 4)}, v{vEXT} offset:{1024 * (G2 % N - RING)}')
            if inlds(G) and q % 4 == 0:
                e(f's_waitcnt lgkmcnt({5 if inlds(G2) else 0})')
            m, j = q >> 1, q & 1
            if G < N:
                u, M = m & 3, m >> 2
                d = vr(ACC + 4 * (M & 1), 4)
                first = (u == 0 and j == 0)
                e(f'v_mfma_f32_16x16x32_bf16 {d}, {vr(reg(G), 4)}, {vr(QB + 8 * u + 4 * j, 4)}, {"0" if first else d}')
                flush_one()
                if u == 3 and j == 1:
                    assert not pend
                    a = ACC + 4 * (M & 1)
                    pend.extend([None,
                                 f'v_mov_b32_dpp v{T0}, v{a} quad_perm:[0,0,0,0] {DPPM}',
                                 f'v_mov_b32_dpp v{T1}, v{a + 1} quad_perm:[1,1,1,1] {DPPM}',
                                 f'v_add_f32_dpp v{T0}, v{a + 2}, v{T0} quad_perm:[2,2,2,2] {DPPM}',
                                 f'v_add_f32_dpp v{T1}, v{a + 3}, v{T1} quad_perm:[3,3,3,3] {DPPM}',
                                 f'v_add_f32 v{T0}, v{T0}, v{T1}',
                                 ('W', M)])
            else:
                d = vr(ACC + 4 * j, 4)
                e(f'v_mfma_f32_16x16x32_bf16 {d}, {vr(AB + 4 * (m & 1), 4)}, {vr(reg(G), 4)}, {"0" if m == 0 else d}')
                if j == 0 and m + 1 < N // 2:
                    if (m + 1) & 15 == 0:
                        MM = (m + 1) >> 4
                        e(f's_waitcnt lgkmcnt(0)\nv_mov_b32 v{PC}, v{PN}')
                        e(f'ds_read_b32 v{PN}, v{vPR} offset:{L_SC + 256 * (MM + 1) - st["lds"]}')
                    aprep(m + 1)
            st['P'] = G + 1

        def flush_one():
            if pend:
                x = pend.pop(0)
                if isinstance(x, tuple):
                    M = x[1]
                    e(f'ds_write_b32 v{vSW}, v{T0} offset:{L_SC + 256 * (M >> 2) + 16 * (M & 3) - st["lds"]}')
                elif x:
                    e(x)

        def catchup(base):
            tgt = base + 32 * ((RING + EXT[base // N] + 16 + 31) // 32)
            k = 0
            while st['L'] < tgt + D:
                budget = 1 if k < D else o['cbud']
                while budget and st['P'] < min(st['landed'], tgt, st['L'] - D) and not (inlds(st['P'] + 8) and st['P'] + 8 >= st['landed']):
                    proc()
                    budget -= 1
                load()
                k += 1
            while st['P'] < tgt:
                proc()
            return (tgt - base) // 32

        def steady(base, i0, i1, areg):
            assert st['P'] == base + 32 * i0 and st['L'] == st['P'] + D
            lp = self.lab('st')
            e(f's_mov_b32 s{sCNT}, {i1 - i0}')
            e(f'{lp}:')
            p0 = list(pend)
            for _ in range(32):
                load()
                proc()
            chk = lambda p: [('W', x[1] & 3) if isinstance(x, tuple) else x for x in p]
            assert chk(p0) == chk(pend)
            e(f'v_add_u32 v{areg}, 0x100, v{areg}')
            e(f's_sub_u32 s{sCNT}, s{sCNT}, 1\ns_cmp_lg_u32 s{sCNT}, 0\ns_cbranch_scc1 {lp}')
            adv = 32 * (i1 - i0 - 1)
            st['L'] += adv
            st['P'] += adv
            st['landed'] += adv
            st['lds'] += 256 * (i1 - i0)
            for i, x in enumerate(pend):
                if isinstance(x, tuple):
                    pend[i] = ('W', x[1] + 4 * (i1 - i0 - 1))

        self.c('K run-ahead')
        f0 = o['fl0']
        while st['L'] < f0:
            load(63)
        self.srd(R_V, 8, 512 << 20)
        e(f'v_lshlrev_b32 v7, 4, v2\nv_lshl_add_u32 v{vV}, v1, 9, v7')
        self.c('score write address: wave*4096 + 64g + 4(n>>2); p read address: wave*4096 + 4*lane')
        e(f's_lshl_b32 s{sCNT}, s{sW}, 12')
        e(f'v_and_b32 v7, 12, v2\nv_lshl_add_u32 v7, v1, 6, v7\nv_add_u32 v{vSW}, s{sCNT}, v7')
        e(f'v_lshl_add_u32 v{vPR}, v0, 2, s{sCNT}')
        e(f's_mul_i32 s{sEXT}, s{sW}, {1024 * max(EXT)}\ns_add_u32 s{sEXT}, s{sEXT}, {L_EXT}')
        self.c('PV selector masks')
        e('v_and_b32 v7, 1, v2\nv_lshlrev_b32 v7, 4, v7\nv_mov_b32 v9, 0xffff\nv_lshlrev_b32 v7, v7, v9\nv_lshrrev_b32 v9, 1, v2')
        for r in range(4):
            e(f'v_cmp_eq_u32 vcc, {r}, v9\nv_cndmask_b32 v{MSK + r}, 0, v7, vcc')
        for u in range(4):
            e(f's_mov_b32 s{sM + 2 * u}, {0x000f000f << (4 * u):#x}\ns_mov_b32 s{sM + 2 * u + 1}, s{sM + 2 * u}')
        e(f'v_lshl_add_u32 v{vEXT}, v0, 4, s{sEXT}')
        e(f's_cmp_lg_u32 s{sW}, 3\ns_cbranch_scc1 L_acked\ns_waitcnt vmcnt(0)\nL_acked:')
        if o['hold']:
            e(f's_bitcmp1_b32 {sum(1 << r for r in o["hold"])}, s{sG}\ns_cbranch_scc1 L_deep')
        st0 = dict(st)
        load()
        self.stamp(5, 2)
        if o['hold']:
            while st['L'] < o['nb']:
                load()
            e('s_branch L_joined\nL_deep:')
            self.c('workgroups that first fetched prologue weights catch up with a deeper queue')
            st.update(st0)
            while st['L'] < o['nb']:
                load(o['flb'])
            e('L_joined:')
        while st['L'] < RING + EXT[0] - o['resv']:
            load()
        self.stamp(1)
        e('s_barrier')
        self.stamp(2)
        e(f'ds_read_b128 {vr(AB, 4)}, v8 offset:{L_Q}\nds_read_b128 {vr(AB + 4, 4)}, v8 offset:{L_Q + 256}')
        ops = [f'v_cndmask_b32 v{QB + 8 * u + r}, 0, v{AB + r}, {sr(sM + 2 * u, 2)}' for u in range(4) for r in range(8)]
        while st['L'] < RING + EXT[0]:
            load()
        e('s_waitcnt lgkmcnt(0)')
        for x in ops:
            e(x)
        steady(0, catchup(0), 15, vSW)
        for _ in range(32):
            load()
            proc()
        while pend:
            flush_one()
        e('s_waitcnt lgkmcnt(0)')
        self.stamp(3, 1)
        e('s_barrier')
        st['lds'] = 0
        self.c('V run-ahead')
        while st['L'] < N + RING + EXT[1] - o['resv']:
            load()
        self.stamp(4, 1)
        e('s_barrier')
        self.stamp(5, 1)
        e(f'ds_read_b32 v{PC}, v{vPR} offset:{L_SC}\nds_read_b32 v{PN}, v{vPR} offset:{L_SC + 256}')
        while st['L'] < N + RING + EXT[1]:
            load()
        e('s_waitcnt lgkmcnt(0)')
        aprep(0)
        ntail = max(1, (o['tail'] + 31) // 32)
        steady(N, catchup(N), 16 - ntail, vPR)
        f2 = fl2 if o['tail'] else None
        while st['L'] < 2 * N:
            load(f2)
            while st['P'] < st['landed'] and st['P'] <= st['L'] - 1 - (f2 or D):
                proc()
        self.stamp(6, 1)
        while st['P'] < 2 * N:
            if st['P'] >= st['landed']:
                e(f's_waitcnt vmcnt({st["L"] - st["P"] - 1})')
                st['landed'] = st['P'] + 1
            proc()
        self.c('per-wave o partial -> LDS')
        e(f's_lshl_b32 s{sCNT}, s{sW}, 10')
        e(f'v_lshlrev_b32 v7, 5, v2\nv_lshl_add_u32 v7, v1, 4, v7\nv_add_u32 v7, s{sCNT}, v7')
        e('s_mov_b32 exec_hi, 0')
        e(f'ds_write_b128 v7, {vr(ACC, 4)} offset:{L_O}\nds_write_b128 v7, {vr(ACC + 4, 4)} offset:{L_O + 512}')
        e('s_mov_b64 exec, -1\nv_lshlrev_b32 v7, 4, v0')
        e(f's_lshl_b32 s{sCNT}, s2, 10\ns_add_u32 s{sCNT}, s{sCNT}, {WS_OP:#x}')
        e('s_waitcnt lgkmcnt(0)')
        self.stamp(7)
        e('s_barrier')
        e(f's_cmp_lg_u32 s{sW}, 0\ns_cbranch_scc1 L_stream_done')
        for w in range(4):
            e(f'ds_read_b128 {vr(32 + 4 * w, 4)}, v7 offset:{L_O + 1024 * w}')
        e('s_waitcnt lgkmcnt(0)')
        for r in range(4):
            e(f'v_add_f32 v{32 + r}, v{32 + r}, v{36 + r}\nv_add_f32 v{40 + r}, v{40 + r}, v{44 + r}')
        for r in range(4):
            e(f'v_add_f32 v{32 + r}, v{32 + r}, v{40 + r}')
        for r in range(4):
            e(f'v_min_u32 v{32 + r}, -2, v{32 + r}')
        e(f'buffer_store_dwordx4 v[32:35], v7, {sr(R_WS, 4)}, s{sCNT} offen sc1')
        self.stamp(8)
        e('L_stream_done:')
        self.stamp_flush(4)
        e('s_endpgm')

    def service(self):
        e, o = self.e, self.o
        wp, pp = o['wpol'], o['ppol']
        vG, vN, vB, vI = 1, 2, 3, 4
        e('L_service:')
        e(f'v_lshrrev_b32 v{vB}, 5, v0\nv_and_b32 v{vI}, 31, v0')
        e(f's_mov_b32 s{sPLO}, 0x05040100\ns_mov_b32 s{sPHI}, 0x07060302\ns_mov_b32 s{sSPIN}, {o["spin"]}')
        aC, aX, aXE, aWM = 5, 6, 7, 8
        CR, XR, XE, RAW, FR, ACC, AF = 12, 14, 22, 64, 96, 128, 160
        aREDw, aREDr, aCNT, ONE, aPUB, aMA, aACTw, aACTr = 44, 45, 46, 47, 48, 49, 50, 51
        sROLE, sF, sU, sVM = 97, 98, 35, 99
        e('s_setprio 3')
        self.c('weight rows 128w + 8(lane>>2) + e, 16 bytes at column 32u + 8(lane&3); rows past 447 read as zero')
        e(f'v_lshrrev_b32 v9, 2, v0\ns_lshl_b32 s{sT0}, s{sW}, 4\nv_add_u32 v10, s{sT0}, v9\ns_lshl_b32 s{sT0}, s{sT3}, 3\nv_mul_u32_u24 v10, s{sT0}, v10')
        e(f'v_and_b32 v11, 3, v0\nv_lshl_add_u32 v10, v11, 4, v10\ns_lshl_b32 s{sT0}, s{sU}, 6\nv_add_u32 v{aWM}, s{sT0}, v10')
        e(f's_cmp_eq_u32 s{sW}, 3\ns_cselect_b32 s{sVM}, 0xffff, -1\ns_mov_b32 vcc_lo, s{sVM}\ns_mov_b32 vcc_hi, s{sVM}')
        e(f'v_mul_u32_u24 v11, 896, v{vB}\ns_lshl_b32 s{sT0}, s{sW}, 8\nv_lshl_add_u32 v{aC}, v{vI}, 3, v11\nv_add_u32 v{aC}, s{sT0}, v{aC}')
        e(f'v_mov_b32 v10, 0x1000\nv_cndmask_b32 v{aC}, v10, v{aC}, vcc')
        e(f'v_mul_u32_u24 v{aX}, 28, v{vI}\nv_add_u32 v{aX}, v{aX}, v11')
        e(f'v_bfe_u32 v10, v0, 3, 1\nv_and_b32 v11, 7, v0\nv_mul_u32_u24 v{aXE}, 896, v10\nv_lshl_add_u32 v{aXE}, v11, 3, v{aXE}')
        e(f's_mul_i32 s{R_WMOD + 2}, s{sT3}, 448\ns_mov_b32 s{R_WMOD + 3}, 0x20000\ns_mov_b32 s{sT2}, 0')
        self.c('epilogue role: 1 = attention output slice, 2 = FFN slice sF, 0 = none')
        e(f's_lshr_b32 s{sF}, s{sHEAD}, 1\ns_lshl_b32 s{sF}, s{sF}, 3\ns_add_u32 s{sF}, s{sF}, s{sS}')
        e(f's_cmp_lt_u32 s{sF}, 28\ns_cselect_b32 s{sT0}, 2, 0\ns_cmp_lt_u32 s{sS}, 7\ns_cselect_b32 s{sT1}, 1, 0')
        e(f's_bitcmp1_b32 s{sHEAD}, 0\ns_cselect_b32 s{sROLE}, s{sT0}, s{sT1}\ns_mov_b32 s{sT0}, {WS_EP:#x}')
        e('s_waitcnt lgkmcnt(0)')
        self.stamp(6, 2)
        e(f's_load_dword s{sE}, s[28:29], s{sT0}')
        hm = sum(1 << r for r in o['hold'])
        e(f's_bitcmp1_b32 {hm}, s{sG}\ns_cbranch_scc1 L_role\ns_barrier\ns_cmp_eq_u32 s{sG}, 0\ns_cbranch_scc1 L_common\nL_role:')
        e(f's_cmp_eq_u32 s{sG}, 3\ns_cselect_b32 s{R_WMOD}, s10, s22\ns_cselect_b32 s{R_WMOD + 1}, s11, s23\ns_cbranch_scc1 L_wload')
        self.srd(R_C, 20, 1792)
        e(f'buffer_load_dwordx2 {vr(CR, 2)}, v{aC}, {sr(R_C, 4)}, 0 offen')
        e(f's_cmp_lg_u32 s{sG}, 4\ns_cbranch_scc1 L_wload')
        self.srd(R_X, 4, 1792)
        e(f's_lshl_b32 s{sT0}, s{sU}, 6\ns_sub_u32 s{sT0}, s{sT0}, 896')
        e(f'buffer_load_dwordx4 {vr(XR, 4)}, v{aX}, {sr(R_X, 4)}, 0 offen')
        e(f'buffer_load_dwordx3 {vr(XR + 4, 3)}, v{aX}, {sr(R_X, 4)}, 0 offen offset:16')
        e(f'buffer_load_dwordx2 {vr(XE, 2)}, v{aXE}, {sr(R_X, 4)}, s{sT0} offen')
        e('L_wload:')
        e(f's_bitcmp1_b32 {hm}, s{sG}\ns_cbranch_scc0 L_wslow')
        for slow in (0, 1):
            for k in range(8):
                if slow and k >= o['pdepth']:
                    e(f's_waitcnt vmcnt({o["pdepth"] - 1})')
                e(f'buffer_load_dwordx4 {vr(RAW + 4 * k, 4)}, v{aWM}, {sr(R_WMOD, 4)}, s{sT2} offen {pp}')
                e(f's_add_u32 s{sT2}, s{sT2}, s{sT3}')
            if not slow:
                e('s_barrier\ns_branch L_common\nL_wslow:')
        e('L_common:')
        self.srd(R_WS, 28, WS_SIZE)
        if 'S' in o['off']:
            e('s_branch L_service_done')
        self.srd(R_X, 4, 1792)
        self.srd(R_OUT, 24, 1792)
        self.srd(R_WB, 18, 1792 * 896)
        self.c('R_WA = wo for even heads, w1 for odd heads')
        e(f's_bitcmp1_b32 s{sHEAD}, 0')
        e(f's_cselect_b32 s{R_WA}, s16, s12\ns_cselect_b32 s{R_WA + 1}, s17, s13')
        e(f's_mov_b32 s{sT0}, {448 * 3584}\ns_cselect_b32 s{R_WA + 2}, s{sT0}, {4096 * 896}\ns_mov_b32 s{R_WA + 3}, 0x20000')
        e(f'v_mov_b32 v{aCNT}, {L_CNT}\nv_mov_b32 v{ONE}, 1')
        e(f's_cmp_eq_u32 s{sG}, 0\ns_cbranch_scc1 L_norole')
        e(f's_lshl_b32 s{sT0}, s{sW}, 9\nv_lshl_add_u32 v{aACTw}, v0, 3, s{sT0}')
        e(f'v_bfe_u32 v10, v0, 1, 1\nv_lshlrev_b32 v10, 8, v10\nv_lshl_add_u32 v10, v9, 4, v10\nv_add_u32 v{aACTr}, s{sT0}, v10')
        e(f's_lshl_b32 s{sT0}, s{sW}, 10\ns_add_u32 s{sT0}, s{sT0}, {L_RED}\nv_and_b32 v10, 3, v0\nv_lshlrev_b32 v10, 5, v10')
        e(f'v_lshl_add_u32 v10, v{vG}, 8, v10\nv_add_u32 v{aREDw}, s{sT0}, v10')
        e(f'v_lshlrev_b32 v10, 4, v{vN}\nv_lshl_add_u32 v{aREDr}, v{vG}, 10, v10')
        e(f'v_bfe_u32 v10, v0, 3, 1\nv_lshlrev_b32 v10, 14, v10\nv_lshl_add_u32 v10, v{vG}, 15, v10\nv_lshl_add_u32 v{aPUB}, v11, 4, v10')
        e(f'v_lshlrev_b32 v10, 14, v{vB}\nv_lshl_add_u32 v{aMA}, v{vI}, 4, v10')
        e(f's_cmp_eq_u32 s{sG}, 3\ns_cbranch_scc1 L_perm')

        def actfrags():
            e(f'v_cvt_pk_bf16_f32 v{CR}, v24, v25\nv_cvt_pk_bf16_f32 v{CR + 1}, v26, v27')
            e(f'ds_write_b64 v{aACTw}, {vr(CR, 2)} offset:{L_ACT}\nds_read_b128 {vr(AF, 4)}, v{aACTr} offset:{L_ACT}')

        def unpack4(d, a, b):
            e(f'v_and_b32 v{d + 3}, 0xffff0000, v{b}\nv_lshlrev_b32 v{d + 2}, 16, v{b}\nv_and_b32 v{d + 1}, 0xffff0000, v{a}\nv_lshlrev_b32 v{d}, 16, v{a}')
        e('s_waitcnt vmcnt(8)')
        unpack4(24, CR, CR + 1)
        self.silu([24, 25, 26, 27], [28, 29, 30, 31])
        actfrags()
        e(f's_cmp_lg_u32 s{sG}, 4\ns_cbranch_scc1 L_perm')
        self.c('scale blocks: layernorm of x (statistics with batch = lane>>5)')
        XF, NRM = 24, 52
        for k in range(7):
            e(f'v_lshlrev_b32 v{XF + 2 * k}, 16, v{XR + k}\nv_and_b32 v{XF + 2 * k + 1}, 0xffff0000, v{XR + k}')
        S, MEAN, TT, RINV = 38, 39, 40, 41
        e(f'v_add_f32 v{S}, v{XF}, v{XF + 1}\nv_add_f32 v{TT}, v{XF + 2}, v{XF + 3}')
        for k in range(4, 14, 2):
            e(f'v_add_f32 v{S}, v{S}, v{XF + k}\nv_add_f32 v{TT}, v{TT}, v{XF + k + 1}')
        e(f'v_add_f32 v{S}, v{S}, v{TT}')
        self.allred('v_add_f32', [S], [TT], 32)
        self.div448(MEAN, S, TT)
        for k in range(14):
            e(f'v_sub_f32 v{XF + k}, v{XF + k}, v{MEAN}')
        e(f'v_mul_f32 v{S}, v{XF}, v{XF}\nv_mul_f32 v{TT}, v{XF + 1}, v{XF + 1}')
        for k in range(2, 14, 2):
            e(f'v_fmac_f32 v{S}, v{XF + k}, v{XF + k}\nv_fmac_f32 v{TT}, v{XF + k + 1}, v{XF + k + 1}')
        e(f'v_add_f32 v{S}, v{S}, v{TT}')
        self.allred('v_add_f32', [S], [TT], 32)
        self.div448(RINV, S, TT)
        self.rnd2(MEAN, RINV, TT)
        e(f'v_add_f32 v{RINV}, {f2u(1e-5)}, v{RINV}')
        self.rnd(RINV, RINV)
        e(f'v_sqrt_f32 v{RINV}, v{RINV}')
        self.rnd(RINV, RINV)
        e(f'v_rcp_f32 v{RINV}, v{RINV}')
        e(f'v_mov_b32 v{S}, v{MEAN}\nv_mov_b32 v{TT}, v{RINV}\ns_mov_b32 vcc_lo, 0xff00ff00\ns_mov_b32 vcc_hi, 0xff00ff00')
        e(f'v_permlane32_swap_b32 v{MEAN}, v{S}\nv_permlane32_swap_b32 v{RINV}, v{TT}')
        e(f'v_cndmask_b32 v{MEAN}, v{MEAN}, v{S}, vcc\nv_cndmask_b32 v{RINV}, v{RINV}, v{TT}, vcc')
        unpack4(NRM, XE, XE + 1)
        for k in range(4):
            e(f'v_sub_f32 v{NRM + k}, v{NRM + k}, v{MEAN}')
        self.rnd2(NRM, NRM + 1, 28)
        self.rnd2(NRM + 2, NRM + 3, 29)
        for k in range(4):
            e(f'v_mul_f32 v{NRM + k}, v{NRM + k}, v{RINV}')
        self.rnd2(NRM, NRM + 1, 28)
        self.rnd2(NRM + 2, NRM + 3, 29)
        e('L_perm:')
        for r in range(4):
            e(f's_waitcnt vmcnt({6 - 2 * r})')
            for c in range(8):
                x = RAW + 8 * r + (c >> 1)
                e(f'v_perm_b32 v{FR + 4 * c + r}, v{x + 4}, v{x}, s{sPHI if c & 1 else sPLO}')
        self.stamp(2)
        e(f's_waitcnt lgkmcnt(0)\ns_mul_i32 s{sTAG}, s{sE}, 0x9e3779b1\ns_add_u32 s{sTAG}, s{sTAG}, 0x7f4a7c15')
        e(f's_cmp_lg_u32 s{sG}, 3\ns_cbranch_scc1 L_mfma')
        self.c('h = norm*(1+scale) + shift, both terms fetched as {two bf16 values, launch tag}')
        e(f's_sub_u32 s{sT0}, s{sBH}, 12\ns_lshl_b32 s{sT0}, s{sT0}, 15\ns_lshl_b32 s{sT1}, s{sW}, 9\ns_add_u32 s{sT2}, s{sT0}, s{sT1}')
        e('v_mov_b32 v32, 0\nv_mov_b32 v34, 0\nv_mov_b32 v36, 0\nv_mov_b32 v38, 0')
        e(f's_mov_b32 exec_lo, s{sVM}\ns_mov_b32 exec_hi, s{sVM}')
        ld = (f'buffer_load_dwordx4 v[32:35], v{aMA}, {sr(R_WS, 4)}, s{sT2} offen sc1\n'
              f'buffer_load_dwordx4 v[36:39], v{aMA}, {sr(R_WS, 4)}, s{sT2} offen offset:1792 sc1')
        self.tagpoll(ld, [33, 35, 37, 39], o['asleep'], first=(f's_sleep {o["adelay"]}\n' if o['adelay'] else '') + ld)
        e('s_mov_b64 exec, -1')
        self.stamp(9, 2)
        unpack4(24, 32, 34)
        unpack4(28, 36, 38)
        for k in range(4):
            e(f'v_add_f32 v{24 + k}, v{24 + k}, v{28 + k}')
        actfrags()
        e('s_waitcnt lgkmcnt(0)')
        e('L_mfma:')
        self.c('128 rows x 32 columns per wave; A row = (row quarter, batch), valid where it matches the lane quarter')
        for c in range(8):
            e(f'v_mfma_f32_16x16x32_bf16 {vr(ACC + 4 * c, 4)}, {vr(AF, 4)}, {vr(FR + 4 * c, 4)}, 0')
        e(f's_lshl_b32 s{sT2}, s{sU}, 7\ns_lshl_b32 s{sT3}, s{sW}, 17\ns_add_u32 s{sT2}, s{sT2}, s{sT3}')
        e(f's_cmp_eq_u32 s{sG}, 3\ns_cselect_b32 s{sT3}, {WS_QA:#x}, {WS_MA}\ns_add_u32 s{sT2}, s{sT2}, s{sT3}')
        e('s_mov_b32 exec_lo, 0x00f0000f\ns_mov_b32 exec_hi, 0xf0000f00')
        for c in range(8):
            e(f'ds_write2_b32 v{aREDw}, v{ACC + 4 * c}, v{ACC + 4 * c + 2} offset0:{c} offset1:{32 + c}')
        e(f's_mov_b64 exec, 1\nds_add_u32 v{aCNT}, v{ONE}\ns_mov_b64 exec, -1')
        self.stamp(7, 2)
        e(f's_bitcmp1_b32 s{sG}, 1\ns_cselect_b32 s{sT0}, s{sW}, 0\ns_cmp_lg_u32 s{sT0}, 0\ns_cbranch_scc1 L_getq')
        self.ldswait(aCNT, 0, 4, 32)
        for q in range(4):
            e(f'ds_read_b128 {vr(24 + 4 * q, 4)}, v{aREDr} offset:{L_RED + 256 * q}')
        e('s_waitcnt lgkmcnt(0)')
        for r in range(4):
            e(f'v_add_f32 v{24 + r}, v{24 + r}, v{28 + r}\nv_add_f32 v{32 + r}, v{32 + r}, v{36 + r}')
        for r in range(4):
            e(f'v_add_f32 v{24 + r}, v{24 + r}, v{32 + r}')
        self.rowred('v_add_f32', [24, 25, 26, 27], [28, 29, 30, 31], 64)
        e(f's_cmp_lg_u32 s{sG}, 4\ns_cbranch_scc1 L_pub')
        self.rnd2(24, 25, 28)
        self.rnd2(26, 27, 29)
        for k in range(4):
            e(f'v_add_f32 v{24 + k}, 1.0, v{24 + k}')
        self.rnd2(24, 25, 28)
        self.rnd2(26, 27, 29)
        for k in range(4):
            e(f'v_mul_f32 v{24 + k}, v{24 + k}, v{NRM + k}')
        e('L_pub:')
        self.c('publish; the shift and scale terms get sixteen copies')
        e(f'v_cvt_pk_bf16_f32 v24, v24, v25\nv_cvt_pk_bf16_f32 v26, v26, v27\nv_mov_b32 v25, s{sTAG}\nv_mov_b32 v27, s{sTAG}')
        e(f's_bitcmp1_b32 s{sG}, 1\ns_cselect_b32 exec_lo, 0xffff, -1\ns_cselect_b32 exec_hi, 0, -1')
        e(f'buffer_store_dwordx4 v[24:27], v{aPUB}, {sr(R_WS, 4)}, s{sT2} offen sc1')
        e('s_mov_b64 exec, -1')
        self.stamp(3)
        e('s_branch L_getq')
        e('L_norole:')
        e(f's_waitcnt lgkmcnt(0)\ns_mul_i32 s{sTAG}, s{sE}, 0x9e3779b1\ns_add_u32 s{sTAG}, s{sTAG}, 0x7f4a7c15')
        e('L_getq:')
        e(f's_cmp_lg_u32 s{sW}, 0\ns_cbranch_scc1 L_qdone')
        if 'P' in o['off']:
            e('s_branch L_qdone')
        self.c('wave 0 fetches q of this (batch, head)')
        e(f's_lshl_b32 s{sT2}, s{sBH}, 10\ns_add_u32 s{sT2}, s{sT2}, {WS_QA:#x}\nv_lshlrev_b32 v11, 4, v0\nv_lshlrev_b32 v10, 3, v0')
        e('s_waitcnt vmcnt(0)')
        if o['qdelay']:
            e(f's_cmp_eq_u32 s{sG}, 3\ns_cbranch_scc1 L_qgo\ns_sleep {o["qdelay"]}\nL_qgo:')
        self.tagpoll(f'buffer_load_dwordx4 v[36:39], v11, {sr(R_WS, 4)}, s{sT2} offen sc1', [37, 39], o['qsleep'])
        self.stamp(4)
        e(f'v_mov_b32 v37, v38\nds_write_b64 v10, v[36:37] offset:{L_Q}')
        e('L_qdone:')
        e('s_waitcnt vmcnt(0) lgkmcnt(0)')
        self.stamp(5)
        e('s_setprio 0')
        e('s_barrier')

        WA, WB, STG = 128, 192, 64
        self.c('epilogue weights -> MFMA fragments in registers')
        if 'W' in o['off']:
            e('s_branch L_wdone')
        e(f's_cmp_eq_u32 s{sROLE}, 0\ns_cbranch_scc1 L_wdone')
        e(f's_cmp_eq_u32 s{sROLE}, 2\ns_cbranch_scc1 L_w12')
        e(f'v_mul_u32_u24 v8, {8 * 896}, v{vG}\nv_lshl_add_u32 v8, v{vN}, 3, v8')
        e(f's_lshl_b32 s{sT0}, s{sHEAD}, 1\ns_add_u32 s{sT0}, s{sT0}, s{sW}\ns_mul_i32 s{sT2}, s{sT0}, {128 * 896}')
        e(f's_lshl_b32 s{sT0}, s{sS}, 7\ns_add_u32 s{sT2}, s{sT2}, s{sT0}\ns_movk_i32 s{sT3}, 896')
        for t in range(4):
            self.rowloads(STG, 8, R_WA, sT2, sT3, 8, wp, o['wdepth'])
            e(f's_add_u32 s{sT2}, s{sT2}, {24 * 896}\ns_waitcnt vmcnt(0)')
            self.perm(STG, WA + 16 * t, 8)
        e('s_branch L_wdone')
        e('L_w12:')
        e(f'v_mul_u32_u24 v9, {4 * 3584}, v{vG}\nv_lshlrev_b32 v11, 3, v{vN}\nv_lshl_add_u32 v8, v9, 1, v11\nv_add_u32 v9, v9, v11')
        e(f's_mul_i32 s{sT2}, s{sW}, {112 * 3584}\ns_lshl_b32 s{sT0}, s{sF}, 7\ns_add_u32 s{sT2}, s{sT2}, s{sT0}\ns_movk_i32 s{sT3}, 3584')
        for t in range(4):
            ne = 8 if t < 3 else 4
            self.rowloads(STG, 8 if t < 3 else 9, R_WA, sT2, sT3, ne, wp, o['wdepth'])
            e(f's_add_u32 s{sT2}, s{sT2}, {24 * 3584}\ns_waitcnt vmcnt(0)')
            self.perm(STG, WA + 16 * t, ne)
        e(f'v_mul_u32_u24 v8, {8 * 896}, v{vG}\nv_add_u32 v8, v8, v11\ns_movk_i32 s{sT3}, 896')
        for a in range(2):
            e(f's_mul_i32 s{sT2}, s{sF}, {64 * 896}\ns_lshl_b32 s{sT0}, s{sW}, 8\ns_add_u32 s{sT2}, s{sT2}, s{sT0}')
            if a:
                e(f's_add_u32 s{sT2}, s{sT2}, 128')
            for t in range(2):
                self.rowloads(STG, 8, R_WB, sT2, sT3, 8, wp, o['wdepth'])
                e(f's_add_u32 s{sT2}, s{sT2}, {24 * 896}\ns_waitcnt vmcnt(0)')
                self.perm(STG, WB + 32 * a + 16 * t, 8)
        e('L_wdone:')

        SC, EX, MX, SUM, T1, T2 = 64, 80, 32, 33, 34, 35
        aSC, aML, aST = 8, 9, 10
        CS = f2u(LOG2E / 16)
        e(f's_lshl_b32 s{sT0}, s{sW}, 12\nv_lshl_add_u32 v{aSC}, v0, 4, s{sT0}\nv_and_b32 v{aML}, 7, v0\nv_lshlrev_b32 v{aML}, 4, v{aML}')
        e(f's_lshl_b32 s{sT0}, s{sW}, 3\nv_mov_b32 v{aST}, s{sT0}\nv_lshlrev_b32 v11, 3, v{vG}')
        e(f's_mul_i32 s{sT4}, s{sBH}, {ML_STRIDE}\ns_add_u32 s{sT4}, s{sT4}, {WS_ML:#x}\ns_lshl_b32 s{sT3}, s{sS}, 4\ns_add_u32 s{sT3}, s{sT3}, s{sT4}')
        e('s_barrier')
        for k in range(4):
            e(f'ds_read_b128 {vr(SC + 4 * k, 4)}, v{aSC} offset:{L_SC + 1024 * k}')
        e('s_waitcnt lgkmcnt(0)')
        for k in range(0, 16, 2):
            self.rnd2(SC + k, SC + k + 1, T1 + ((k >> 1) & 1))
        e(f'v_max3_f32 v{MX}, v{SC}, v{SC + 1}, v{SC + 2}\nv_max3_f32 v{T1}, v{SC + 3}, v{SC + 4}, v{SC + 5}')
        e(f'v_max3_f32 v{MX}, v{MX}, v{SC + 6}, v{SC + 7}\nv_max3_f32 v{T1}, v{T1}, v{SC + 8}, v{SC + 9}')
        e(f'v_max3_f32 v{MX}, v{MX}, v{SC + 10}, v{SC + 11}\nv_max3_f32 v{T1}, v{T1}, v{SC + 12}, v{SC + 13}')
        e(f'v_max3_f32 v{MX}, v{MX}, v{SC + 14}, v{SC + 15}\nv_max_f32 v{MX}, v{MX}, v{T1}')
        self.allred('v_max_f32', [MX], [T1], 64)

        def exps(m):
            for k in range(16):
                e(f'v_sub_f32 v{EX + k}, v{SC + k}, v{m}')
            for k in range(16):
                e(f'v_mul_f32 v{EX + k}, {CS}, v{EX + k}')
            for k in range(16):
                e(f'v_exp_f32 v{EX + k}, v{EX + k}')
        exps(MX)
        e(f'v_add_f32 v{SUM}, v{EX}, v{EX + 1}\nv_add_f32 v{T1}, v{EX + 2}, v{EX + 3}')
        for k in range(4, 16, 2):
            e(f'v_add_f32 v{SUM}, v{SUM}, v{EX + k}\nv_add_f32 v{T1}, v{T1}, v{EX + k + 1}')
        e(f'v_add_f32 v{SUM}, v{SUM}, v{T1}')
        self.allred('v_add_f32', [SUM], [T1], 64)
        e(f's_mov_b64 exec, 1\nds_write_b64 v{aST}, {vr(MX, 2)} offset:{L_STAT}\nds_add_u32 v{aCNT}, v{ONE} offset:4\ns_mov_b64 exec, -1')
        e(f's_cmp_lg_u32 s{sW}, 0\ns_cbranch_scc1 L_mlwait')
        self.c('wave 0: combine the four waves, exchange (max, sum) with the other seven splits')
        self.ldswait(aCNT, 4, 4, T1)
        e(f'ds_read_b64 v[36:37], v11 offset:{L_STAT}\ns_waitcnt lgkmcnt(0)\nv_mov_b32 v40, v36')
        self.rowred('v_max_f32', [40], [T1], 64)
        e(f'v_sub_f32 v36, v36, v40\nv_mul_f32 v36, {CS}, v36\nv_exp_f32 v36, v36\nv_mov_b32 v41, s{sTAG}\nv_mul_f32 v42, v36, v37\nv_mov_b32 v43, s{sTAG}')
        self.rowred('v_add_f32', [42], [T1], 64)
        if 'M' not in o['off']:
            e(f's_mov_b64 exec, 1\nbuffer_store_dwordx4 v[40:43], off, {sr(R_WS, 4)}, s{sT3} sc1\ns_mov_b64 exec, -1\ns_waitcnt vmcnt(0)')
            self.tagpoll(f'buffer_load_dwordx4 v[36:39], v{aML}, {sr(R_WS, 4)}, s{sT4} offen sc1', [37, 39], o['mlsleep'])
        e(f'v_mov_b32 v{MX}, v36')
        for sh in (4, 2, 1):
            e(f'v_max_f32_dpp v{MX}, v{MX}, v{MX} row_ror:{sh} {DPPM}')
        e(f'v_sub_f32 v36, v36, v{MX}\nv_mul_f32 v36, {CS}, v36\nv_exp_f32 v36, v36')
        e(f'v_mul_f32 v{SUM}, v36, v38')
        for sh in (4, 2, 1):
            e(f'v_add_f32_dpp v{SUM}, v{SUM}, v{SUM} row_ror:{sh} {DPPM}')
        e(f'v_rcp_f32 v{SUM}, v{SUM}')
        e(f's_mov_b64 exec, 1\nds_write_b64 v{aST}, {vr(MX, 2)} offset:{L_STAT + 32}\nds_add_u32 v{aCNT}, v{ONE} offset:8\ns_mov_b64 exec, -1')
        e('s_branch L_mlgot')
        e('L_mlwait:')
        self.ldswait(aCNT, 8, 1, T1, sleep=1)
        e(f'ds_read_b64 {vr(MX, 2)}, v{aCNT} offset:{L_STAT + 32 - L_CNT}\ns_waitcnt lgkmcnt(0)')
        e('L_mlgot:')
        exps(MX)
        for k in range(16):
            e(f'v_mul_f32 v{EX + k}, v{EX + k}, v{SUM}')
        for k in range(16):
            e(f'v_cvt_pk_bf16_f32 v{EX + k}, v{EX + k}, v{EX + k}')
        for k in range(4):
            e(f'ds_write_b128 v{aSC}, {vr(EX + 4 * k, 4)} offset:{L_SC + 1024 * k}')
        e('s_waitcnt lgkmcnt(0)')
        self.stamp(6, 1)
        e('s_barrier')
        if 'E' in o['off']:
            e('s_branch L_service_done')
        e(f's_cmp_eq_u32 s{sROLE}, 0\ns_cbranch_scc1 L_service_done')
        self.c('all 256 workgroups have published their statistics, hence emptied their slots and read the tag')
        if 'M' not in o['off']:
            e(f'v_lshrrev_b32 v11, 3, v0\nv_mul_u32_u24 v11, {ML_STRIDE}, v11\nv_add_u32 v11, v11, v{aML}')
            e(f's_mul_i32 s{sT2}, s{sW}, {8 * ML_STRIDE}\ns_add_u32 s{sT2}, s{sT2}, {WS_ML:#x}')
            ld = f'buffer_load_dword v32, v11, {sr(R_WS, 4)}, s{sT2} offen offset:4'
            self.tagpoll(ld + ' sc1', [32], 64, first='s_sleep 127\ns_sleep 127\n' + ld)
        e(f's_cmp_eq_u32 s{sROLE}, 2\ns_cbranch_scc1 L_stage2')

        G0, AF, ACC = 64, 80, 96
        aG, aAw, aAr, aAr2, aRw, aRr = 8, 9, 10, 12, 13, 14
        e(f'v_lshlrev_b32 v{aG}, 3, v0')
        e(f's_lshr_b32 s{sT0}, s{sW}, 1\ns_add_u32 s{sT0}, s{sT0}, s{sBH}\ns_lshl_b32 s{sT0}, s{sT0}, 13')
        e(f's_and_b32 s{sT1}, s{sW}, 1\ns_lshl_b32 s{sT1}, s{sT1}, 9\ns_add_u32 s{sT0}, s{sT0}, s{sT1}')
        e(f's_add_u32 s22, s{sT0}, {WS_OP:#x}\ns_add_u32 s23, s22, 0x1000')
        e(f's_lshl_b32 s{sT0}, s{sW}, 9\nv_lshl_add_u32 v{aAw}, v0, 2, s{sT0}\nv_lshl_add_u32 v{aAr}, v{vG}, 4, s{sT0}')
        e(f'v_lshl_add_u32 v{aRw}, v{vN}, 4, s{sT0}\nv_lshlrev_b32 v{aRr}, 4, v{vN}\nv_lshl_add_u32 v15, v{vG}, 15, v{aRr}')
        self.ap_base(24)
        e('s_barrier')
        self.stamp(7, 1)
        self.poll([(G0 + 2 * z, f'buffer_load_dwordx2 {vr(G0 + 2 * z, 2)}, v{aG}, {sr(R_WS, 4)}, s{22 + (z >> 2)} offen offset:{1024 * (z & 3)} sc1')
                   for z in range(8)], 2, 32)
        self.stamp(8, 1)
        self.sum8(G0)
        e(f'v_cvt_pk_bf16_f32 v32, v{G0}, v{G0 + 1}\nds_write_b32 v{aAw}, v32 offset:{L_ACT}')
        for t in range(4):
            e(f'ds_read_b128 {vr(AF + 4 * t, 4)}, v{aAr} offset:{L_ACT + 64 * t}')
        e('s_waitcnt lgkmcnt(0)')
        for t in range(4):
            self.mfma4(ACC, AF + 4 * t, WA + 16 * t, 8, t == 0)
        for c in range(1, 4):
            e(f'v_mov_b32 v{ACC + c}, v{ACC + 4 * c}')
        e(f'ds_write_b128 v{aRw}, {vr(ACC, 4)} offset:{L_RED}\ns_waitcnt lgkmcnt(0)\ns_barrier')
        e(f's_cmp_lg_u32 s{sW}, 0\ns_cbranch_scc1 L_service_done')
        for w in range(4):
            e(f'ds_read_b128 {vr(32 + 4 * w, 4)}, v{aRr} offset:{L_RED + 512 * w}')
        e('s_waitcnt lgkmcnt(0)')
        for r in range(4):
            e(f'v_add_f32 v{32 + r}, v{32 + r}, v{36 + r}\nv_add_f32 v{40 + r}, v{40 + r}, v{44 + r}')
        for r in range(4):
            e(f'v_add_f32 v{32 + r}, v{32 + r}, v{40 + r}')
        for r in range(4):
            e(f'v_min_u32 v{32 + r}, -2, v{32 + r}')
        e(f'buffer_store_dwordx4 v[32:35], v15, {sr(R_WS, 4)}, s24 offen sc1')
        self.stamp(9, 1)
        e('s_branch L_service_done')

        e('L_stage2:')
        GA, SB, CB, XX, GB = 16, 18, 20, 22, 24
        aUw, aUr, aY, aX1w, aX1r, aST, aPRE, aY3, aO3 = 15, 25, 26, 27, 28, 29, 30, 31, 11
        self.c('lane < 56: columns 112w + 2*lane; lanes 56..63 repeat columns 0,1')
        e(f's_mul_i32 s{sT0}, s{sW}, 448\nv_lshl_add_u32 v{aG}, v0, 3, s{sT0}\nv_cmp_gt_u32 vcc, 56, v0\nv_cndmask_b32 v{aG}, 0, v{aG}, vcc')
        e(f's_lshl_b32 s{sT2}, s{sB}, 14\ns_add_u32 s{sT2}, s{sT2}, {WS_MA + 3584}\ns_add_u32 s{sT3}, s{sT2}, 5376')
        e(f's_lshl_b32 s{sT1}, s{sF}, 6\nv_lshl_add_u32 v{aX1r}, v{vN}, 2, s{sT1}\nv_and_b32 v33, -8, v{aX1r}')
        if 'P' not in o['off']:
            self.tagpoll(f'buffer_load_dwordx2 {vr(GA, 2)}, v{aG}, {sr(R_WS, 4)}, s{sT2} offen sc1\n'
                         f'buffer_load_dwordx2 {vr(SB, 2)}, v{aG}, {sr(R_WS, 4)}, s{sT2} offen offset:1792 sc1\n'
                         f'buffer_load_dwordx2 {vr(CB, 2)}, v{aG}, {sr(R_WS, 4)}, s{sT2} offen offset:3584 sc1\n'
                         f'buffer_load_dwordx2 v[34:35], v33, {sr(R_WS, 4)}, s{sT3} offen sc1', [GA + 1, SB + 1, CB + 1, 35], 8)
        for r in (GA, SB, CB):
            e(f'v_and_b32 v{r + 1}, 0xffff0000, v{r}\nv_lshlrev_b32 v{r}, 16, v{r}')
        e(f'v_and_b32 v35, 1, v{vN}\nv_lshlrev_b32 v35, 4, v35\nv_lshrrev_b32 v34, v35, v34\nv_lshlrev_b32 v{GB}, 16, v34')
        e(f'v_lshrrev_b32 v32, 1, v{aG}\ns_mul_i32 s{sT0}, s{sB}, 896')
        e(f'buffer_load_dword v{XX}, v32, {sr(R_X, 4)}, s{sT0} offen')
        e(f'v_lshrrev_b32 v{aO3}, 1, v{aX1r}\nv_add_u32 v{aO3}, s{sT0}, v{aO3}')
        e(f'v_lshl_add_u32 v{aY3}, v{vG}, 11, v{aX1r}')
        e(f's_lshl_b32 s{sT0}, s{sW}, 9\nv_lshl_add_u32 v{aAw}, v0, 2, s{sT0}\nv_lshl_add_u32 v{aAr}, v{vG}, 4, s{sT0}')
        e(f'v_lshl_add_u32 v{aAr2}, v{vG}, 3, s{sT0}\nv_lshl_add_u32 v{aRw}, v{vN}, 4, s{sT0}\nv_lshlrev_b32 v{aRr}, 2, v0')
        e(f'v_add_u32 v{aRr}, {L_RED}, v{aRr}')
        e(f'v_lshl_add_u32 v{aY}, v{vI}, 4, s{sT0}')
        e(f's_lshl_b32 s{sT0}, s{sW}, 7\nv_lshl_add_u32 v{aUw}, v0, 1, s{sT0}\nv_lshl_add_u32 v{aUr}, v{vG}, 4, s{sT0}')
        e(f's_lshl_b32 s{sT0}, s{sW}, 3\nv_mov_b32 v{aST}, s{sT0}\nv_mov_b32 v5, 0')
        e(f'v_lshlrev_b32 v{aPRE}, 10, v{vI}')
        e(f's_lshl_b32 s{sT0}, s{sB}, 17\ns_lshl_b32 s{sT1}, s{sW}, 15\ns_add_u32 s{sT0}, s{sT0}, s{sT1}\ns_add_u32 s26, s{sT0}, {WS_OP:#x}')
        e(f's_lshr_b32 s{sT1}, s{sF}, 3\ns_lshl_b32 s{sT1}, s{sT1}, 8\ns_add_u32 s26, s26, s{sT1}\ns_lshl_b32 s{sT1}, s{sT1}, 7')
        e(f's_lshl_b32 s{sT0}, s{sB}, 14\ns_add_u32 s{sT0}, s{sT0}, s{sT1}\ns_add_u32 s22, s{sT0}, {WS_AP:#x}\ns_add_u32 s23, s22, 0x1000\ns_add_u32 s24, s23, 0x1000\ns_add_u32 s25, s24, 0x1000')
        e(f's_lshl_b32 s{sT0}, s{sB}, 16\ns_add_u32 s28, s{sT0}, {WS_YP:#x}\ns_lshl_b32 s{sT1}, s{sF}, 11\ns_add_u32 s27, s28, s{sT1}')
        e(f's_cmp_eq_u32 s{sW}, 3\ns_cselect_b32 s29, 0xffff, -1')
        for k in range(7):
            e(f's_add_u32 s{36 + k}, s28, {8192 * k}')
        e('s_mov_b32 s48, -1\ns_mov_b32 s49, 0x00ffffff\ns_mov_b32 s50, 0xffff0000\ns_mov_b32 s51, 0')
        e('s_waitcnt vmcnt(0)')
        e(f'v_and_b32 v{XX + 1}, 0xffff0000, v{XX}\nv_lshlrev_b32 v{XX}, 16, v{XX}')
        e(f'v_add_f32 v{CB}, 1.0, v{CB}\nv_add_f32 v{CB + 1}, 1.0, v{CB + 1}')
        self.rnd2(CB, CB + 1, 32)
        e('s_barrier')
        self.stamp(7, 1)
        self.poll([(32, f'buffer_load_dword v32, v{aPRE}, {sr(R_WS, 4)}, s26 offen sc1')], 1, 33, sleep=2)
        self.poll([(G0 + 2 * z, f'buffer_load_dwordx2 {vr(G0 + 2 * z, 2)}, v{aG}, {sr(R_WS, 4)}, s{22 + (z >> 1)} offen offset:{2048 * (z & 1)} sc1')
                   for z in range(8)], 2, 32)
        self.stamp(8, 1)
        self.sum8(G0)
        X1, D0, S1, S2, MEAN, RINV = 34, 36, 38, 39, 40, 41
        self.rnd2(G0, G0 + 1, 32)
        e(f'v_mul_f32 v{G0}, v{G0}, v{GA}\nv_mul_f32 v{G0 + 1}, v{G0 + 1}, v{GA + 1}')
        self.rnd2(G0, G0 + 1, 32)
        e(f'v_add_f32 v{X1}, v{G0}, v{XX}\nv_add_f32 v{X1 + 1}, v{G0 + 1}, v{XX + 1}')
        self.rnd2(X1, X1 + 1, 32)
        e(f'v_readlane_b32 s{sT0}, v{X1}, 56')
        e(f'ds_write_b64 v{aG}, {vr(X1, 2)} offset:{L_X1}')
        e(f'v_subrev_f32 v{D0}, s{sT0}, v{X1}\nv_subrev_f32 v{D0 + 1}, s{sT0}, v{X1 + 1}')
        e(f'v_cndmask_b32 v{D0 + 1}, 0, v{D0 + 1}, s[48:49]')
        e(f'v_add_f32 v{S1}, v{D0}, v{D0 + 1}\nv_mul_f32 v{S2}, v{D0}, v{D0}\nv_fmac_f32 v{S2}, v{D0 + 1}, v{D0 + 1}')
        self.allred('v_add_f32', [S1, S2], [32, 33], 64)
        e(f'ds_write_b64 v{aST}, {vr(S1, 2)} offset:{L_STAT}\ns_waitcnt lgkmcnt(0)\ns_barrier')
        e(f'ds_read_b128 v[44:47], v5 offset:{L_STAT}\nds_read_b128 v[48:51], v5 offset:{L_STAT + 16}\ns_waitcnt lgkmcnt(0)')
        e('v_add_f32 v44, v44, v46\nv_add_f32 v45, v45, v47\nv_add_f32 v48, v48, v50\nv_add_f32 v49, v49, v51')
        e(f'v_add_f32 v{S1}, v44, v48\nv_add_f32 v{S2}, v45, v49')
        e(f'v_mov_b32 v44, s{sT0}\nv_fmamk_f32 v44, v44, {f2u(448.0)}, v{S1}')
        self.div448(MEAN, 44, 45)
        e(f'v_mul_f32 v46, {f2u(-1 / 448)}, v{S1}\nv_fmac_f32 v{S2}, v46, v{S1}\nv_mul_f32 v{RINV}, {f2u(1 / 448)}, v{S2}\nv_max_f32 v{RINV}, 0, v{RINV}')
        self.rnd2(MEAN, RINV, 32)
        e(f'v_add_f32 v{RINV}, {f2u(1e-5)}, v{RINV}')
        e(f'v_sub_f32 v{D0}, v{X1}, v{MEAN}\nv_sub_f32 v{D0 + 1}, v{X1 + 1}, v{MEAN}')
        self.rnd(RINV, RINV)
        e(f'v_sqrt_f32 v{RINV}, v{RINV}')
        self.rnd2(D0, D0 + 1, 32)
        self.rnd(RINV, RINV)
        e(f'v_rcp_f32 v{RINV}, v{RINV}')
        e(f'v_mul_f32 v{D0}, v{D0}, v{RINV}\nv_mul_f32 v{D0 + 1}, v{D0 + 1}, v{RINV}')
        self.rnd2(D0, D0 + 1, 32)
        e(f'v_mul_f32 v{D0}, v{D0}, v{CB}\nv_mul_f32 v{D0 + 1}, v{D0 + 1}, v{CB + 1}')
        self.rnd2(D0, D0 + 1, 32)
        e(f'v_add_f32 v{D0}, v{D0}, v{SB}\nv_add_f32 v{D0 + 1}, v{D0 + 1}, v{SB + 1}')
        e(f'v_cvt_pk_bf16_f32 v32, v{D0}, v{D0 + 1}\nds_write_b32 v{aAw}, v32 offset:{L_ACT}')
        for t in range(3):
            e(f'ds_read_b128 {vr(AF + 4 * t, 4)}, v{aAr} offset:{L_ACT + 64 * t}')
        e(f'ds_read_b64 {vr(AF + 12, 2)}, v{aAr2} offset:{L_ACT + 192}')
        e(f'ds_read_b32 v{X1}, v{aX1r} offset:{L_X1}')
        e('s_waitcnt lgkmcnt(0)')
        for t in range(4):
            self.mfma4(ACC, AF + 4 * t, WA + 16 * t, 8 if t < 3 else 4, t == 0)
        for c in range(1, 4):
            e(f'v_mov_b32 v{ACC + c}, v{ACC + 4 * c}')
        e(f'ds_write_b128 v{aRw}, {vr(ACC, 4)} offset:{L_RED}\ns_waitcnt lgkmcnt(0)\ns_barrier')
        e(f'ds_read2st64_b32 v[44:45], v{aRr} offset0:0 offset1:2\nds_read2st64_b32 v[46:47], v{aRr} offset0:4 offset1:6\ns_waitcnt lgkmcnt(0)')
        e('v_add_f32 v44, v44, v45\nv_add_f32 v46, v46, v47\nv_add_f32 v44, v44, v46')
        self.rnd(44, 44)
        self.silu([44], [45])
        e(f'v_cvt_pk_bf16_f32 v44, v44, v44\nds_write_b16 v{aUw}, v44 offset:{L_H}')
        e(f'ds_read_b128 {vr(AF, 4)}, v{aUr} offset:{L_H}\nds_read_b128 {vr(AF + 4, 4)}, v{aUr} offset:{L_H + 64}\ns_waitcnt lgkmcnt(0)')
        for t in range(2):
            for a in range(2):
                self.mfma4(ACC + 16 * a, AF + 4 * t, WB + 32 * a + 16 * t, 8, t == 0)
        for c in range(4):
            e(f'v_cndmask_b32 v{44 + c}, v{ACC + 4 * c}, v{ACC + 16 + 4 * c}, s[50:51]')
        for c in range(4):
            e(f'v_min_u32 v{44 + c}, -2, v{44 + c}')
        e(f's_mov_b32 exec_lo, s29\ns_mov_b32 exec_hi, 0')
        e(f'buffer_store_dwordx4 v[44:47], v{aY}, {sr(R_WS, 4)}, s27 offen sc1')
        e('s_mov_b64 exec, -1')
        self.stamp(1)
        e(f's_cmp_lg_u32 s{sW}, 0\ns_cbranch_scc1 L_service_done')

        self.poll([(G0 + k, f'buffer_load_dword v{G0 + k}, v{aY3}, {sr(R_WS, 4)}, s{36 + k} offen sc1') for k in range(7)], 1, 32)
        e(f'v_add_f32 v{G0}, v{G0}, v{G0 + 1}\nv_add_f32 v{G0 + 2}, v{G0 + 2}, v{G0 + 3}\nv_add_f32 v{G0 + 4}, v{G0 + 4}, v{G0 + 5}')
        e(f'v_add_f32 v{G0}, v{G0}, v{G0 + 2}\nv_add_f32 v{G0 + 4}, v{G0 + 4}, v{G0 + 6}\nv_add_f32 v{G0}, v{G0}, v{G0 + 4}')
        self.rowred('v_add_f32', [G0], [32], 64)
        self.rnd(G0, G0)
        e(f'v_mul_f32 v{G0}, v{G0}, v{GB}')
        self.rnd(G0, G0)
        e(f'v_add_f32 v{G0}, v{G0}, v{X1}\nv_cvt_pk_bf16_f32 v{G0}, v{G0}, v{G0}')
        e(f's_mov_b64 exec, 0xffff\nbuffer_store_short v{G0}, v{aO3}, {sr(R_OUT, 4)}, 0 offen')
        self.stamp(9, 1)
        self.c('every reader of the launch tag is done: advance it so a later launch cannot accept these granules')
        e(f's_cmp_lg_u32 s2, 8\ns_cbranch_scc1 L_service_done')
        e(f's_add_u32 s{sE}, s{sE}, 1\ns_mov_b32 s{sT0}, {WS_EP:#x}\nv_mov_b32 v32, s{sE}\ns_mov_b64 exec, 1')
        e(f'buffer_store_dword v32, off, {sr(R_WS, 4)}, s{sT0} sc1')
        e('L_service_done:')
        self.stamp_flush(0)
        e('L_end:')
        e('s_endpgm')

    def ap_base(self, d):
        e = self.e
        e(f's_lshr_b32 s{d}, s{sBH}, 1\ns_lshl_b32 s{d}, s{d}, 11\ns_lshl_b32 s{sT1}, s{sS}, 8')
        e(f's_add_u32 s{d}, s{d}, s{sT1}\ns_add_u32 s{d}, s{d}, {WS_AP:#x}')

    def sum8(self, g):
        e = self.e
        for st in (2, 4, 8):
            for z in range(0, 16, 2 * st):
                e(f'v_add_f32 v{g + z}, v{g + z}, v{g + z + st}\nv_add_f32 v{g + z + 1}, v{g + z + 1}, v{g + z + st + 1}')

    def build(self):
        self.entry()
        self.stream()
        self.service()
        lines, n = hazard.fix(self.L)
        ref = open(os.path.join(os.path.dirname(os.path.abspath(__file__)), 'head.txt')).read()
        txt = ref + f'; @launch grid=(256,1,1) block=(512,1,1) lds={L_EXT + 4096 * max(self.o["ext"])}\n'
        txt += f'.amdgcn_target "amdgcn-amd-amdhsa--gfx950"\n.text\n.globl {KERNEL}\n.p2align 8\n.type {KERNEL},@function\n{KERNEL}:\n'
        txt += '\n'.join(lines) + '\n'
        txt += f'''.section .rodata,"a"
.p2align 6
.amdhsa_kernel {KERNEL}
  .amdhsa_next_free_vgpr 256
  .amdhsa_next_free_sgpr 102
  .amdhsa_accum_offset 256
  .amdhsa_group_segment_fixed_size 0
  .amdhsa_kernarg_size 104
  .amdhsa_user_sgpr_count 2
  .amdhsa_user_sgpr_kernarg_segment_ptr 1
  .amdhsa_system_sgpr_workgroup_id_x 1
.end_amdhsa_kernel
'''
        return txt


if __name__ == '__main__':
    out = sys.argv[1]
    opts = eval('dict(' + (sys.argv[2] if len(sys.argv) > 2 else '') + ')')
    open(out, 'w').write(Gen(**opts).build())
```

```python
import sys, os, struct
sys.path.insert(0, os.path.dirname(os.path.abspath(__file__)))
import hazard

NAME = 'adaLN_cond__mha_block_cached__dense_activation_silu__decode'
KERNEL = NAME + '_kernel'

WS_MA, WS_QA, WS_EP, WS_ML, WS_OP, WS_AP, WS_YP, WS_ST = 0x0, 0x80000, 0x88000, 0x90000, 0x100000, 0x140000, 0x160000, 0x200000
ML_STRIDE = 4352
WS_MK = 0xc0000
WS_SIZE = 0x400000
L_SC, L_Q, L_CNT, L_O, L_RED, L_ACT, L_H, L_X1, L_STAT = 0, 16384, 16896, 17408, 21504, 25600, 27648, 28160, 30208
L_EXT = 32768

sS, sBH, sB, sHEAD, sW, sJ = 30, 31, 32, 33, 34, 35
R_K, R_V, R_WS = 36, 40, 44
R_WMOD, R_ST, R_C, R_X, R_WA, R_WB, R_OUT = 36, 40, 48, 52, 60, 64, 68
sDRY = 96
sPLO, sPHI, sSPIN = 72, 73, 74
sT0, sT1, sT2, sT3, sT4 = 56, 57, 58, 59, 75
STAMP0 = 76
sG, sE, sTAG = 3, 100, 101
DPPM = 'row_mask:0xf bank_mask:0xf'


def f2u(x):
    return '0x%08x' % struct.unpack('<I', struct.pack('<f', x))[0]


LOG2E = 1.4426950408889634


def vr(a, n):
    return f'v[{a}:{a + n - 1}]' if n > 1 else f'v{a}'


def sr(a, n):
    return f's[{a}:{a + n - 1}]'


class Gen:
    def __init__(self, **o):
        self.o = dict(fl=(5,), fl2=8, tail=0, ring=48, diag=False, wpol='nt', ppol='nt', fl0=5, flb=6, ext=(32, 32), hold=(1, 4), pdepth=3, kvpol='nt', spin=1 << 20,
                      resv=4, cbud=8, fb=(-2, -1, 0, 0, 1, 1, 2, 3), fbper=2, fbcut=(6, 12, 24), fbpos=(14, 18, 26), fbhi=6, fblo=4, fbtail=(1, 7), etrig=0, dry=0, presleep=2, cal=None, nb=40, off='', wdepth=2, asleep=8, adelay=0, qdelay=100, qsleep=32, mlsleep=8)
        self.o.update(o)
        self.L = []
        self.uid = 0

    def e(self, s):
        for x in s.split('\n'):
            x = x.strip()
            if x:
                self.L.append(x if x.endswith(':') else '    ' + x)

    def c(self, s):
        self.L.append('    ; ' + s)

    def lab(self, p):
        self.uid += 1
        return f'L_{p}_{self.uid}'

    def srd(self, r, p, size):
        self.e(f's_mov_b32 s{r}, s{p}\ns_mov_b32 s{r+1}, s{p+1}\ns_mov_b32 s{r+2}, {size:#x}\ns_mov_b32 s{r+3}, 0x20000')

    def stamp(self, k, mode=0):
        if self.o['diag'] and mode in (0, self.o['diag']):
            self.e(f's_memrealtime {sr(STAMP0 + 2 * k, 2)}')

    def stamp_init(self):
        if self.o['diag']:
            for k in range(10):
                self.e(f's_mov_b32 s{STAMP0 + 2 * k}, 0')

    def stamp_flush(self, wave_base):
        if not self.o['diag']:
            return
        e = self.e
        cal = self.o['cal']
        if cal:
            base, role, k, mul = cal
            if role == wave_base:
                lp, dn = self.lab('cal'), self.lab('cald')
                e(f's_waitcnt lgkmcnt(0)\ns_sub_u32 s4, s{STAMP0 + 2 * k}, s{STAMP0}\ns_cmp_eq_u32 s{STAMP0 + 2 * k}, 0\ns_cbranch_scc1 {dn}\ns_cmp_eq_u32 s{STAMP0 + 14}, 0\ns_cbranch_scc1 {dn}')
                e(f's_mul_i32 s4, s4, {mul}\ns_add_u32 s4, s4, {base * 100}\ns_min_u32 s4, s4, 200000')
                e(f'{lp}:\ns_sleep 1\ns_memrealtime s[6:7]\ns_waitcnt lgkmcnt(0)\ns_sub_u32 s6, s6, s{STAMP0}\ns_cmp_lt_u32 s6, s4\ns_cbranch_scc1 {lp}\n{dn}:')
            return
        e('s_mov_b64 exec, -1\ns_waitcnt lgkmcnt(0)\nv_mov_b32 v5, 0')
        for k in range(10):
            e(f'v_writelane_b32 v5, s{STAMP0 + 2 * k}, {k}')
        e(f's_lshl_b32 s{sT0}, s2, 3\ns_add_u32 s{sT0}, s{sT0}, s{sW}\ns_add_u32 s{sT0}, s{sT0}, {wave_base}')
        e(f's_lshl_b32 s{sT0}, s{sT0}, 6\ns_add_u32 s{sT0}, s{sT0}, {WS_ST:#x}')
        e('v_lshlrev_b32 v6, 2, v0\ns_mov_b64 exec, 0xffff')
        e(f'buffer_store_dword v5, v6, {sr(R_WS, 4)}, s{sT0} offen')

    def spin_tail(self, loop, sleep=0):
        if sleep:
            self.e(f's_sleep {sleep}')
        self.e(f's_sub_u32 s{sSPIN}, s{sSPIN}, 1\ns_cmp_gt_i32 s{sSPIN}, 0\ns_cbranch_scc1 {loop}')

    def rnd(self, d, s):
        self.e(f'v_cvt_pk_bf16_f32 v{d}, v{s}, v{s}\nv_and_b32 v{d}, 0xffff0000, v{d}')

    def rnd2(self, a, b, t):
        self.e(f'v_cvt_pk_bf16_f32 v{t}, v{a}, v{b}\nv_lshlrev_b32 v{a}, 16, v{t}\nv_and_b32 v{b}, 0xffff0000, v{t}')

    def allred(self, op, regs, tmps, width):
        for sh in (8, 4, 2, 1):
            for r in regs:
                self.e(f'{op}_dpp v{r}, v{r}, v{r} row_ror:{sh} {DPPM}')
        self.rowred(op, regs, tmps, width)

    def rowred(self, op, regs, tmps, width):
        for sw in ((16,) if width == 32 else (16, 32)):
            for r, t in zip(regs, tmps):
                self.e(f'v_mov_b32 v{t}, v{r}')
            for r, t in zip(regs, tmps):
                self.e(f'v_permlane{sw}_swap_b32 v{r}, v{t}')
            for r, t in zip(regs, tmps):
                self.e(f'{op} v{r}, v{r}, v{t}')

    def div448(self, d, s, t):
        self.e(f'v_mul_f32 v{d}, {f2u(1 / 448)}, v{s}')
        self.e(f'v_fmamk_f32 v{t}, v{d}, {f2u(-448.0)}, v{s}')
        self.e(f'v_fmac_f32 v{d}, {f2u(1 / 448)}, v{t}')

    def silu(self, regs, tmps):
        e = self.e
        for r, t in zip(regs, tmps):
            e(f'v_mul_f32 v{t}, {f2u(-LOG2E)}, v{r}')
        for r, t in zip(regs, tmps):
            e(f'v_exp_f32 v{t}, v{t}')
        for r, t in zip(regs, tmps):
            e(f'v_add_f32 v{t}, 1.0, v{t}')
        for r, t in zip(regs, tmps):
            e(f'v_rcp_f32 v{t}, v{t}')
        for r, t in zip(regs, tmps):
            e(f'v_mul_f32 v{r}, v{r}, v{t}')

    def perm(self, raw, frag, ne):
        h = ne // 2
        for c in range(4):
            for r in range(h):
                x = raw + 4 * r + (c >> 1)
                y = x + 2
                self.e(f'v_perm_b32 v{frag + c * h + r}, v{y}, v{x}, s{sPHI if c & 1 else sPLO}')

    def mfma4(self, acc, a, frag, ne, first):
        h = ne // 2
        op = 'v_mfma_f32_16x16x32_bf16' if ne == 8 else 'v_mfma_f32_16x16x16_bf16'
        for c in range(4):
            d = vr(acc + 4 * c, 4)
            self.e(f'{op} {d}, {vr(a, h)}, {vr(frag + c * h, h)}, {"0" if first else d}')

    def rowloads(self, raw, voff, srd, soff, sstride, ne, pol, depth=0):
        for k in range(ne):
            if depth:
                self.e(f's_waitcnt vmcnt({depth - 1})')
            self.e(f'buffer_load_dwordx2 {vr(raw + 2 * k, 2)}, v{voff}, {sr(srd, 4)}, s{soff} offen {pol}')
            self.e(f's_add_u32 s{soff}, s{soff}, s{sstride}')

    def tagpoll(self, loads, tags, sleep=0, first=None):
        e = self.e
        lp, dn = self.lab('tp'), self.lab('tpd')
        e(first or loads)
        e(f'{lp}:\ns_waitcnt vmcnt(0)')
        for i, t in enumerate(tags):
            e(f'v_cmp_ne_u32 {sr(4 + 2 * i, 2)}, s{sTAG}, v{t}')
        e(f's_or_b64 vcc, s[4:5], {sr(4 + 2 * (len(tags) - 1), 2)}')
        for i in range(1, len(tags) - 1):
            e(f's_or_b64 vcc, vcc, {sr(4 + 2 * i, 2)}')
        e(f's_cbranch_scc0 {dn}')
        if sleep:
            e(f's_sleep {sleep}')
        e(loads)
        self.spin_tail(lp)
        e(f's_waitcnt vmcnt(0)\n{dn}:')

    def ldswait(self, areg, off, target, tmp, sleep=0):
        e = self.e
        lp, dn = self.lab('sy'), self.lab('syd')
        e(f'{lp}:\nds_read_b32 v{tmp}, v{areg} offset:{off}\ns_waitcnt lgkmcnt(0)\nv_readfirstlane_b32 s{sT0}, v{tmp}')
        e(f's_cmp_ge_u32 s{sT0}, {target}\ns_cbranch_scc1 {dn}')
        self.spin_tail(lp, sleep)
        e(f'{dn}:')

    def poll(self, loads, nreg, tmp, sleep=0, first=None):
        e = self.e
        lp, dn = self.lab('poll'), self.lab('polled')
        n = len(loads)
        for i, (d, t) in enumerate(loads):
            if first and first[i]:
                e(first[i])
            e(t)
        if first:
            e('s_mov_b64 exec, -1')
        e(f'{lp}:')
        for i, (d, t) in enumerate(loads):
            e(f's_waitcnt vmcnt({n - 1 - i})')
            src = d
            if nreg == 4:
                e(f'v_max3_u32 v{tmp}, v{d}, v{d + 1}, v{d + 2}\nv_max_u32 v{tmp}, v{tmp}, v{d + 3}')
                src = tmp
            e(f'v_cmp_eq_u32 {sr(4 + 2 * i, 2)}, -1, v{src}')
        e(f's_or_b64 vcc, s[4:5], {sr(4 + 2 * (n - 1), 2)}')
        for i in range(1, n - 1):
            e(f's_or_b64 vcc, vcc, {sr(4 + 2 * i, 2)}')
        e(f's_cbranch_scc0 {dn}')
        if sleep:
            e(f's_sleep {sleep}')
        for i, (d, t) in enumerate(loads):
            e(f's_mov_b64 exec, {sr(4 + 2 * i, 2)}')
            e(t)
        e('s_mov_b64 exec, -1\ns_waitcnt vmcnt(0)')
        self.spin_tail(lp)
        e(f'{dn}:')

    def bar(self):
        if self.o['dry']:
            lb = self.lab('nb')
            self.e(f's_cmp_lg_u32 s{sDRY}, 0\ns_cbranch_scc1 {lb}\ns_barrier\n{lb}:')
        else:
            self.e('s_barrier')

    def unitloads(self, raw, voff, srd, soff, sstride, pol):
        for k in range(8):
            self.e(f'buffer_load_dwordx4 {vr(raw + 4 * k, 4)}, v{voff}, {sr(srd, 4)}, s{soff} offen {pol}')
            self.e(f's_add_u32 s{soff}, s{soff}, s{sstride}')

    def unitperm(self, raw, frag, younger):
        for r in range(4):
            self.e(f's_waitcnt vmcnt({younger + 6 - 2 * r})')
            for c in range(8):
                x = raw + 8 * r + (c >> 1)
                self.e(f'v_perm_b32 v{frag + 4 * c + r}, v{x + 4}, v{x}, s{sPHI if c & 1 else sPLO}')

    def mfma8(self, acc, a, frag, first):
        for c in range(8):
            d = vr(acc + 4 * c, 4)
            self.e(f'v_mfma_f32_16x16x32_bf16 {d}, {vr(a, 4)}, {vr(frag + 4 * c, 4)}, {"0" if first else d}')

    def pk(self, op, d, a, b):
        self.e(f'v_pk_{op}_f32 {vr(d, 2)}, {vr(a, 2)}, {vr(b, 2)}')

    def sum4x4(self, g):
        for h in (0, 2):
            self.pk('add', g + h, g + h, g + 4 + h)
            self.pk('add', g + 8 + h, g + 8 + h, g + 12 + h)
        for h in (0, 2):
            self.pk('add', g + h, g + h, g + 8 + h)
        self.e(f'v_permlane32_swap_b32 v{g}, v{g + 2}\nv_permlane32_swap_b32 v{g + 1}, v{g + 3}')
        self.pk('add', g, g, g + 2)

    def entry(self):
        e = self.e
        e('s_cmp_ge_u32 s2, 256\ns_cbranch_scc1 L_end')
        e('s_load_dwordx16 s[4:19], s[0:1], 0\ns_load_dwordx8 s[20:27], s[0:1], 64\ns_load_dwordx2 s[28:29], s[0:1], 96')
        self.stamp_init()
        self.stamp(0)
        e(f'v_lshrrev_b32 v1, 6, v0\nv_and_b32 v0, 63, v0\nv_readfirstlane_b32 s{sW}, v1')
        e(f'v_mov_b32 v2, {L_CNT}\nv_mov_b32 v4, 0\nv_mov_b32 v5, 0\nv_mov_b32 v6, 0\nv_mov_b32 v7, 0\nds_write_b128 v2, v[4:7]\nds_write_b32 v2, v4 offset:16')
        e(f's_and_b32 s{sS}, s2, 7\ns_lshr_b32 s{sBH}, s2, 3\ns_lshr_b32 s{sB}, s2, 7\ns_and_b32 s{sHEAD}, s{sBH}, 15')
        e('v_lshrrev_b32 v1, 4, v0\nv_and_b32 v2, 15, v0')
        sU = 35
        self.c('prologue role sG: 1 shift, 4 scale, 2 gate columns of w_mod, 3 columns of wq, 0 none; sU = 32-column block')
        e(f's_lshr_b32 s{sT0}, s{sBH}, 1\ns_lshl_b32 s{sT0}, s{sT0}, 3\ns_add_u32 s{sT0}, s{sT0}, s{sS}\ns_sub_u32 s{sT1}, s{sT0}, 48')
        e(f's_cmp_lt_u32 s{sT0}, 42\ns_cselect_b32 s{sG}, 2, 0\ns_cmp_lt_u32 s{sT0}, 14\ns_cselect_b32 s{sG}, 4, s{sG}')
        e(f's_cmp_lt_u32 s{sT0}, 7\ns_cselect_b32 s{sG}, 1, s{sG}\ns_movk_i32 s{sT2}, 0x2000')
        e(f's_cmp_lt_u32 s{sT1}, 64\ns_cselect_b32 s{sG}, 3, s{sG}\ns_cselect_b32 s{sT0}, s{sT1}, s{sT0}\ns_cselect_b32 s{sT3}, s{sT2}, 5376')
        e(f's_and_b32 s{sT1}, s{sBH}, 1\ns_lshl_b32 s{sU}, s{sT0}, 1\ns_add_u32 s{sU}, s{sU}, s{sT1}')
        if set('SP') & set(self.o['off']):
            e(f's_mov_b32 s{sG}, 0')
        for r in '1234':
            if r in self.o['off']:
                e(f's_cmp_eq_u32 s{sG}, {r}\ns_cselect_b32 s{sG}, 0, s{sG}')
        e(f's_cmp_lt_u32 s{sW}, 4\ns_cbranch_scc1 L_service')

    def stream(self):
        e, o = self.e, self.o
        RING, fl, fl2 = o['ring'], o['fl'], o['fl2']
        FB = o['fb']
        D = max(fl) if not FB else o['fbhi'] + 2
        R_MK, sRND, sLV, sMKS, sTAB = 64, 68, 69, 70, 71
        vK, vV, vSW, vPR = 3, 4, 5, 6
        ACC, T0, T1, PC, PN, MSK, AB, QB, RB = 8, 16, 17, 18, 19, 20, 24, 32, 64
        sOFF, sCNT, sM, sSTEP = 48, 49, 50, 60
        N = 512
        e(f's_sub_u32 s{sW}, s{sW}, 4')
        e('s_setprio 2')
        self.c('K lane offset: key = n>>2, chunk = (n&3) + 4g')
        e(f'v_lshrrev_b32 v7, 2, v2\nv_and_b32 v8, 3, v2\nv_lshl_add_u32 v8, v1, 2, v8\nv_lshlrev_b32 v8, 4, v8')
        e(f'v_lshl_add_u32 v{vK}, v7, 9, v8')
        e(f's_lshl_b32 s{sOFF}, s2, 21\ns_lshl_b32 s{sCNT}, s{sW}, 11\ns_add_u32 s{sOFF}, s{sOFF}, s{sCNT}')
        e(f's_mov_b32 s61, s{sOFF}\ns_movk_i32 s{sSTEP}, 0x2000')
        e('s_waitcnt lgkmcnt(0)')
        self.stamp(3, 2)
        self.srd(R_K, 6, 512 << 20)
        e('s_barrier')
        self.stamp(4, 2)
        st = dict(L=0, P=0, lds=0, extra=())
        pend = []

        EXT = o['ext']
        vEXT, sEXT = 7, 62

        def inlds(G):
            return RING <= G % N < RING + EXT[G // N]

        def reg(G):
            q = G % N
            if inlds(G):
                return RB + 4 * (q - 32)
            return RB + 4 * (q if q < RING else q % 16)

        def load(f=None):
            G = st['L']
            if G == N:
                e(f's_mov_b32 s{sOFF}, s61')
            if f is None:
                f = fl[G % len(fl)]
            cnt = f - 1 + sum(1 for x in st['extra'] if G - x < f)
            e(f's_waitcnt vmcnt({cnt})')
            st['landed'] = max(st.get('landed', 0), G - cnt)
            isV = G >= N
            srd = sr(R_V if isV else R_K, 4)
            if inlds(G):
                e(f's_add_u32 m0, s{sEXT}, {1024 * (G % N - RING) - 256 * (G & 1)}')
                e(f'buffer_load_dwordx4 v{vV if isV else vK}, {srd}, s{sOFF} offen offset:{256 * (G & 1)} {o["kvpol"]} lds')
            else:
                for G2 in range(st['P'], G):
                    assert reg(G2) != reg(G), (G, G2)
                e(f'buffer_load_dwordx4 {vr(reg(G), 4)}, v{vV if isV else vK}, {srd}, s{sOFF} offen offset:{256 * (G & 1)} {o["kvpol"]}')
            if G & 1:
                e(f's_add_u32 s{sOFF}, s{sOFF}, s{sSTEP}')
            st['L'] = G + 1

        def aprep(m):
            for r in range(4):
                e(f'v_and_b32_dpp v{AB + 4 * (m & 1) + r}, v{PC}, v{MSK + r} row_newbcast:{m & 15} {DPPM}')

        def proc():
            G = st['P']
            assert G < st['landed'], (G, st)
            q = G % N
            G2 = G + 8
            if inlds(G2):
                assert G2 < st['landed'], (G2, st)
                e(f'ds_read_b128 {vr(reg(G2), 4)}, v{vEXT} offset:{1024 * (G2 % N - RING)}')
            if inlds(G) and q % 4 == 0:
                e(f's_waitcnt lgkmcnt({5 if inlds(G2) else 0})')
            m, j = q >> 1, q & 1
            if G < N:
                u, M = m & 3, m >> 2
                d = vr(ACC + 4 * (M & 1), 4)
                first = (u == 0 and j == 0)
                e(f'v_mfma_f32_16x16x32_bf16 {d}, {vr(reg(G), 4)}, {vr(QB + 8 * u + 4 * j, 4)}, {"0" if first else d}')
                flush_one()
                if u == 3 and j == 1:
                    assert not pend
                    a = ACC + 4 * (M & 1)
                    pend.extend([None,
                                 f'v_mov_b32_dpp v{T0}, v{a} quad_perm:[0,0,0,0] {DPPM}',
                                 f'v_mov_b32_dpp v{T1}, v{a + 1} quad_perm:[1,1,1,1] {DPPM}',
                                 f'v_add_f32_dpp v{T0}, v{a + 2}, v{T0} quad_perm:[2,2,2,2] {DPPM}',
                                 f'v_add_f32_dpp v{T1}, v{a + 3}, v{T1} quad_perm:[3,3,3,3] {DPPM}',
                                 f'v_add_f32 v{T0}, v{T0}, v{T1}',
                                 ('W', M)])
            else:
                d = vr(ACC + 4 * j, 4)
                e(f'v_mfma_f32_16x16x32_bf16 {d}, {vr(AB + 4 * (m & 1), 4)}, {vr(reg(G), 4)}, {"0" if m == 0 else d}')
                if j == 0 and m + 1 < N // 2:
                    if (m + 1) & 15 == 0:
                        MM = (m + 1) >> 4
                        e(f's_waitcnt lgkmcnt(0)\nv_mov_b32 v{PC}, v{PN}')
                        e(f'ds_read_b32 v{PN}, v{vPR} offset:{L_SC + 256 * (MM + 1) - st["lds"]}')
                    aprep(m + 1)
            st['P'] = G + 1

        def flush_one():
            if pend:
                x = pend.pop(0)
                if isinstance(x, tuple):
                    M = x[1]
                    e(f'ds_write_b32 v{vSW}, v{T0} offset:{L_SC + 256 * (M >> 2) + 16 * (M & 3) - st["lds"]}')
                elif x:
                    e(x)

        def catchup(base):
            tgt = base + 32 * ((RING + EXT[base // N] + 16 + 31) // 32)
            k = 0
            while st['L'] < tgt + D:
                budget = 1 if k < max(fl) else o['cbud']
                while budget and st['P'] < min(st['landed'], tgt, st['L'] - D) and not (inlds(st['P'] + 8) and st['P'] + 8 >= st['landed']):
                    proc()
                    budget -= 1
                load()
                k += 1
            while st['P'] < tgt:
                proc()
            return (tgt - base) // 32

        def feedback(i, F):
            vMK, vPA, vPS, vPD, vLV, vLA = F, F + 1, F + 2, F + 3, F + 4, F + 5
            pw, pr, pc = o['fbpos']
            if i == pw:
                e(f'v_mov_b32 v{vMK}, s{sRND}\nv_add_u32 v{vPA}, v{vPA}, v{vPS}\nv_and_b32 v{vPA}, 0xffff, v{vPA}\ns_mov_b64 exec, 1')
                e(f'buffer_store_dword v{vMK}, off, {sr(R_MK, 4)}, s{sM} sc1\ns_mov_b64 exec, -1')
                st['extra'] += (st['L'],)
            if i == pr:
                e(f's_mov_b64 exec, 0x7f\nbuffer_load_dword v{vPD}, v{vPA}, {sr(R_MK, 4)}, 0 offen sc1\ns_mov_b64 exec, -1')
                st['extra'] += (st['L'],)
                st['peer'] = st['L']
            if i == pc:
                assert st['landed'] > st['peer']
                lb = self.lab('nofb')
                e(f's_cmp_eq_u32 s{R_MK + 2}, 0\ns_cbranch_scc1 {lb}')
                e(f'v_subrev_u32 v{vPD}, s{sRND}, v{vPD}\nv_cmp_gt_u32 vcc, 64, v{vPD}\ns_and_b32 s{sM + 1}, vcc_lo, 0x7f\ns_bcnt1_i32_b32 s{sM + 1}, s{sM + 1}')
                e(f's_lshl_b32 s{sM + 1}, s{sM + 1}, 2\ns_lshr_b32 s{sM + 1}, s{sTAB}, s{sM + 1}\ns_and_b32 s{sM + 1}, s{sM + 1}, 15\ns_sub_u32 s{sM + 1}, s{sM + 1}, 4')
                e(f'v_mov_b32 v{vMK}, s{sM + 1}\nds_write_b32 v{vLA}, v{vMK} offset:16\n{lb}:')
                e(f's_add_u32 s{sRND}, s{sRND}, 1')
                if o['fbper'] == 2:
                    e(f's_xor_b32 s{R_MK + 2}, s{R_MK + 2}, s{sMKS}')
            if i == 30:
                e(f'ds_read_b32 v{vLV}, v{vLA} offset:16')

        def steady(base, i0, i1, areg, F):
            assert st['P'] == base + 32 * i0 and st['L'] == st['P'] + D
            lp = self.lab('st')
            e(f's_mov_b32 s{sCNT}, {i1 - i0}')
            chk = lambda p: [('W', x[1] & 3) if isinstance(x, tuple) else x for x in p]
            p0, st0 = list(pend), dict(st)
            copies = [('m', None)]
            if FB:
                copies = [('h', o['fbhi'])] + ([('l', o['fblo'])] if min(FB) < 0 else []) + copies
                e(f's_branch {lp}m0')
            for tag, f in copies:
                pend[:] = p0
                st.update(st0)
                for i in range(32):
                    if i == 0:
                        e(f'{lp}{tag}0:')
                    if FB and i in o['fbcut']:
                        j = o['fbcut'].index(i) + 1
                        if tag == 'm':
                            e(f'{lp}m{j}:')
                            st['landed'] = min(st['landed'], st['L'] - D + 1)
                        else:
                            e(f's_cmp_eq_i32 s{sLV}, {j if tag == "h" else -j}\ns_cbranch_scc1 {lp}m{j}')
                    load(f)
                    proc()
                    if FB:
                        feedback(i, F)
                assert chk(p0) == chk(pend)
                if tag != 'm':
                    e(f's_branch {lp}end')
            e(f'{lp}end:')
            e(f'v_add_u32 v{areg}, 0x100, v{areg}')
            if FB:
                e(f's_waitcnt lgkmcnt(0)\nv_readfirstlane_b32 s{sLV}, v{F + 4}')
                e(f's_sub_u32 s{sCNT}, s{sCNT}, 1\ns_cmp_eq_u32 s{sCNT}, 0\ns_cbranch_scc1 {lp}out')
                e(f's_cmp_gt_i32 s{sLV}, 0\ns_cbranch_scc1 {lp}h0')
                if min(FB) < 0:
                    e(f's_cmp_lt_i32 s{sLV}, 0\ns_cbranch_scc1 {lp}l0')
                e(f's_branch {lp}m0\n{lp}out:')
                st['landed'] = min(st['landed'], st['L'] - D + 1)
            else:
                e(f's_sub_u32 s{sCNT}, s{sCNT}, 1\ns_cmp_lg_u32 s{sCNT}, 0\ns_cbranch_scc1 {lp}m0')
            adv = 32 * (i1 - i0 - 1)
            st['L'] += adv
            st['P'] += adv
            st['landed'] += adv
            st['lds'] += 256 * (i1 - i0)
            st['extra'] = ()
            for i, x in enumerate(pend):
                if isinstance(x, tuple):
                    pend[i] = ('W', x[1] + 4 * (i1 - i0 - 1))

        self.c('K run-ahead')
        f0 = o['fl0']
        while st['L'] < f0:
            load(63)
        self.srd(R_V, 8, 512 << 20)
        self.srd(R_WS, 28, WS_SIZE)
        if FB:
            e(f's_mov_b32 s{sT0}, {WS_EP:#x}\ns_load_dword s{sE}, s[28:29], s{sT0}')
            e(f's_add_u32 s{R_MK}, s28, {WS_MK:#x}\ns_addc_u32 s{R_MK + 1}, s29, 0\ns_mov_b32 s{R_MK + 3}, 0x20000')
            e(f's_cmp_eq_u32 s{sW}, 0\ns_cselect_b32 s{sMKS}, 0x10000, 0\ns_mov_b32 s{R_MK + 2}, s{sMKS}')
            e(f's_mov_b32 s{sTAB}, {sum((x + 4) << (4 * i) for i, x in enumerate(FB)):#x}')
        e(f'v_lshlrev_b32 v7, 4, v2\nv_lshl_add_u32 v{vV}, v1, 9, v7')
        self.c('score write address: wave*4096 + 64g + 4(n>>2); p read address: wave*4096 + 4*lane')
        e(f's_lshl_b32 s{sCNT}, s{sW}, 12')
        e(f'v_and_b32 v7, 12, v2\nv_lshl_add_u32 v7, v1, 6, v7\nv_add_u32 v{vSW}, s{sCNT}, v7')
        e(f'v_lshl_add_u32 v{vPR}, v0, 2, s{sCNT}')
        e(f's_mul_i32 s{sEXT}, s{sW}, {1024 * max(EXT)}\ns_add_u32 s{sEXT}, s{sEXT}, {L_EXT}')
        self.c('PV selector masks')
        e('v_and_b32 v7, 1, v2\nv_lshlrev_b32 v7, 4, v7\nv_mov_b32 v9, 0xffff\nv_lshlrev_b32 v7, v7, v9\nv_lshrrev_b32 v9, 1, v2')
        for r in range(4):
            e(f'v_cmp_eq_u32 vcc, {r}, v9\nv_cndmask_b32 v{MSK + r}, 0, v7, vcc')
        for u in range(4):
            e(f's_mov_b32 s{sM + 2 * u}, {0x000f000f << (4 * u):#x}\ns_mov_b32 s{sM + 2 * u + 1}, s{sM + 2 * u}')
        e(f'v_lshl_add_u32 v{vEXT}, v0, 4, s{sEXT}')
        if o['hold']:
            e(f's_bitcmp1_b32 {sum(1 << r for r in o["hold"])}, s{sG}\ns_cbranch_scc1 L_deep')
        st0 = dict(st)
        load()
        self.stamp(5, 2)
        if o['hold']:
            while st['L'] < o['nb']:
                load()
            e('s_branch L_joined\nL_deep:')
            self.c('workgroups that first fetched prologue weights catch up with a deeper queue')
            st.update(st0)
            while st['L'] < o['nb']:
                load(o['flb'])
            e('L_joined:')
        while st['L'] < RING + EXT[0] - o['resv']:
            load()
        self.stamp(1)
        if FB:
            e(f's_waitcnt lgkmcnt(0)\ns_mul_i32 s{sRND}, s{sE}, 0x9e3779b1\ns_add_u32 s{sRND}, s{sRND}, 0x7f4a7c15')
        e('s_barrier')
        self.stamp(2)
        e(f'ds_read_b128 {vr(AB, 4)}, v8 offset:{L_Q}\nds_read_b128 {vr(AB + 4, 4)}, v8 offset:{L_Q + 256}')
        ops = [f'v_cndmask_b32 v{QB + 8 * u + r}, 0, v{AB + r}, {sr(sM + 2 * u, 2)}' for u in range(4) for r in range(8)]
        while st['L'] < RING + EXT[0]:
            load()
        e('s_waitcnt lgkmcnt(0)')
        for x in ops:
            e(x)
        if FB:
            e(f'v_add_u32 v{AB + 1}, s2, v0\nv_add_u32 v{AB + 1}, 1, v{AB + 1}\nv_and_b32 v{AB + 1}, 7, v{AB + 1}\ns_and_b32 s{sM}, s2, 0xf8')
            e(f'v_or_b32 v{AB + 1}, s{sM}, v{AB + 1}\nv_lshlrev_b32 v{AB + 1}, 8, v{AB + 1}\nv_lshlrev_b32 v{AB + 2}, 11, v0')
            e(f'v_mov_b32 v{AB + 5}, {L_CNT}\ns_lshl_b32 s{sM}, s2, 8')
        steady(0, catchup(0), 15, vSW, AB)
        for _ in range(32):
            load()
            proc()
        while pend:
            flush_one()
        if FB:
            for r in (1, 2, 5):
                e(f'v_mov_b32 v{QB + r}, v{AB + r}')
        e('s_waitcnt lgkmcnt(0)')
        self.stamp(3, 1)
        e('s_barrier')
        st['lds'] = 0
        self.c('V run-ahead')
        while st['L'] < N + RING + EXT[1] - o['resv']:
            load()
        self.stamp(4, 1)
        e('s_barrier')
        self.stamp(5, 1)
        e(f'ds_read_b32 v{PC}, v{vPR} offset:{L_SC}\nds_read_b32 v{PN}, v{vPR} offset:{L_SC + 256}')
        while st['L'] < N + RING + EXT[1]:
            load()
        e('s_waitcnt lgkmcnt(0)')
        aprep(0)
        ntail = max(1, (o['tail'] + 31) // 32)
        steady(N, catchup(N), 16 - ntail, vPR, QB)
        f2 = fl2 if o['tail'] else None
        e(f's_lshl_b32 s{sCNT}, s{sW}, 10')
        e(f'v_lshlrev_b32 v{vK}, 5, v2\nv_lshl_add_u32 v{vK}, v1, 4, v{vK}\nv_add_u32 v{vK}, s{sCNT}, v{vK}')
        e(f'v_lshlrev_b32 v7, 4, v0\nv_mov_b32 v{vSW}, {L_CNT}\nv_mov_b32 v{T1}, 1')
        e(f's_lshl_b32 s{sCNT}, s2, 10\ns_add_u32 s{sCNT}, s{sCNT}, {WS_OP:#x}')
        def lastpart(f2):
            while st['L'] < 2 * N:
                load(f2)
                if st['L'] == 2 * N - o['etrig']:
                    self.c('release the service waves to fetch the epilogue weights')
                    e('s_barrier')
                k = 2
                while k and st['P'] < st['landed'] and st['L'] < 2 * N:
                    proc()
                    k -= 1
            self.stamp(6, 1)
            while st['P'] < 2 * N:
                if st['P'] >= st['landed']:
                    e(f's_waitcnt vmcnt({st["L"] - st["P"] - 1})')
                    st['landed'] = st['P'] + 1
                proc()
        if FB and o['fbtail']:
            st0 = dict(st)
            thr, f3 = o['fbtail']
            e(f's_cmp_ge_i32 s{sLV}, {thr}\ns_cbranch_scc0 L_tailn')
            lastpart(f3)
            e('s_branch L_tailj\nL_tailn:')
            st.update(st0)
            lastpart(f2)
            e('L_tailj:')
        else:
            lastpart(f2)
        self.c('per-wave o partial -> LDS; the last wave to arrive sums and publishes')
        e('s_mov_b32 exec_hi, 0')
        e(f'ds_write_b128 v{vK}, {vr(ACC, 4)} offset:{L_O}\nds_write_b128 v{vK}, {vr(ACC + 4, 4)} offset:{L_O + 512}')
        e(f's_mov_b64 exec, 1\nds_add_rtn_u32 v{T0}, v{vSW}, v{T1} offset:12\ns_mov_b64 exec, -1')
        self.stamp(7)
        e(f's_waitcnt lgkmcnt(0)\nv_readfirstlane_b32 s{sOFF}, v{T0}\ns_cmp_lg_u32 s{sOFF}, 3\ns_cbranch_scc1 L_stream_done')
        for w in range(4):
            e(f'ds_read_b128 {vr(32 + 4 * w, 4)}, v7 offset:{L_O + 1024 * w}')
        e('s_waitcnt lgkmcnt(0)')
        for h in (0, 2):
            self.pk('add', 32 + h, 32 + h, 36 + h)
            self.pk('add', 40 + h, 40 + h, 44 + h)
        for h in (0, 2):
            self.pk('add', 32 + h, 32 + h, 40 + h)
        for r in range(4):
            e(f'v_min_u32 v{32 + r}, -2, v{32 + r}')
        e(f'buffer_store_dwordx4 v[32:35], v7, {sr(R_WS, 4)}, s{sCNT} offen sc1')
        self.stamp(8)
        e('L_stream_done:')
        self.stamp_flush(4)
        e('s_endpgm')

    def service(self):
        e, o = self.e, self.o
        wp, pp = o['wpol'], o['ppol']
        vG, vN, vB, vI = 1, 2, 3, 4
        e('L_service:')
        e(f'v_lshrrev_b32 v{vB}, 5, v0\nv_and_b32 v{vI}, 31, v0')
        e(f's_mov_b32 s{sPLO}, 0x05040100\ns_mov_b32 s{sPHI}, 0x07060302\ns_mov_b32 s{sSPIN}, {o["spin"]}')
        aC, aX, aXE, aWM = 5, 6, 7, 8
        CR, XR, XE, RAW, FR, ACC, AF = 12, 14, 22, 64, 96, 128, 160
        aREDw, aREDr, aCNT, ONE, aPUB, aMA, aACTw, aACTr = 44, 45, 46, 47, 48, 49, 50, 51
        sROLE, sF, sU, sVM = 97, 98, 35, 99
        e('s_setprio 3')
        self.c('weight rows 128w + 8(lane>>2) + e, 16 bytes at column 32u + 8(lane&3); rows past 447 read as zero')
        e(f'v_lshrrev_b32 v9, 2, v0\ns_lshl_b32 s{sT0}, s{sW}, 4\nv_add_u32 v10, s{sT0}, v9\ns_lshl_b32 s{sT0}, s{sT3}, 3\nv_mul_u32_u24 v10, s{sT0}, v10')
        e(f'v_and_b32 v11, 3, v0\nv_lshl_add_u32 v10, v11, 4, v10\ns_lshl_b32 s{sT0}, s{sU}, 6\nv_add_u32 v{aWM}, s{sT0}, v10')
        e(f's_cmp_eq_u32 s{sW}, 3\ns_cselect_b32 s{sVM}, 0xffff, -1\ns_mov_b32 vcc_lo, s{sVM}\ns_mov_b32 vcc_hi, s{sVM}')
        e(f'v_mul_u32_u24 v11, 896, v{vB}\ns_lshl_b32 s{sT0}, s{sW}, 8\nv_lshl_add_u32 v{aC}, v{vI}, 3, v11\nv_add_u32 v{aC}, s{sT0}, v{aC}')
        e(f'v_mov_b32 v10, 0x1000\nv_cndmask_b32 v{aC}, v10, v{aC}, vcc')
        e(f'v_mul_u32_u24 v{aX}, 28, v{vI}\nv_add_u32 v{aX}, v{aX}, v11')
        e(f'v_bfe_u32 v10, v0, 3, 1\nv_and_b32 v11, 7, v0\nv_mul_u32_u24 v{aXE}, 896, v10\nv_lshl_add_u32 v{aXE}, v11, 3, v{aXE}')
        e(f's_mul_i32 s{R_WMOD + 2}, s{sT3}, 448\ns_mov_b32 s{R_WMOD + 3}, 0x20000\ns_mov_b32 s{sT2}, 0')
        self.c('epilogue role: 1 = attention output slice, 2 = FFN slice sF, 0 = none')
        e(f's_lshr_b32 s{sF}, s{sHEAD}, 1\ns_lshl_b32 s{sF}, s{sF}, 3\ns_add_u32 s{sF}, s{sF}, s{sS}')
        e(f's_cmp_lt_u32 s{sF}, 28\ns_cselect_b32 s{sT0}, 2, 0\ns_cmp_lt_u32 s{sS}, 7\ns_cselect_b32 s{sT1}, 1, 0')
        e(f's_bitcmp1_b32 s{sHEAD}, 0\ns_cselect_b32 s{sROLE}, s{sT0}, s{sT1}\ns_mov_b32 s{sT0}, {WS_EP:#x}')
        e('s_waitcnt lgkmcnt(0)')
        self.stamp(6, 2)
        e(f's_load_dword s{sE}, s[28:29], s{sT0}')
        hm = sum(1 << r for r in o['hold'])
        e(f's_bitcmp1_b32 {hm}, s{sG}\ns_cbranch_scc1 L_role\ns_barrier\ns_cmp_eq_u32 s{sG}, 0\ns_cbranch_scc1 L_common\nL_role:')
        e(f's_cmp_eq_u32 s{sG}, 3\ns_cselect_b32 s{R_WMOD}, s10, s22\ns_cselect_b32 s{R_WMOD + 1}, s11, s23\ns_cbranch_scc1 L_wload')
        self.srd(R_C, 20, 1792)
        e(f'buffer_load_dwordx2 {vr(CR, 2)}, v{aC}, {sr(R_C, 4)}, 0 offen')
        e(f's_cmp_lg_u32 s{sG}, 4\ns_cbranch_scc1 L_wload')
        self.srd(R_X, 4, 1792)
        e(f's_lshl_b32 s{sT0}, s{sU}, 6\ns_sub_u32 s{sT0}, s{sT0}, 896')
        e(f'buffer_load_dwordx4 {vr(XR, 4)}, v{aX}, {sr(R_X, 4)}, 0 offen')
        e(f'buffer_load_dwordx3 {vr(XR + 4, 3)}, v{aX}, {sr(R_X, 4)}, 0 offen offset:16')
        e(f'buffer_load_dwordx2 {vr(XE, 2)}, v{aXE}, {sr(R_X, 4)}, s{sT0} offen')
        e('L_wload:')
        e(f's_bitcmp1_b32 {hm}, s{sG}\ns_cbranch_scc0 L_wslow')
        for slow in (0, 1):
            for k in range(8):
                if slow and k >= o['pdepth']:
                    e(f's_waitcnt vmcnt({o["pdepth"] - 1})')
                e(f'buffer_load_dwordx4 {vr(RAW + 4 * k, 4)}, v{aWM}, {sr(R_WMOD, 4)}, s{sT2} offen {pp}')
                e(f's_add_u32 s{sT2}, s{sT2}, s{sT3}')
            if not slow:
                e('s_barrier\ns_branch L_common\nL_wslow:')
        e('L_common:')
        self.srd(R_WS, 28, WS_SIZE)
        if 'S' in o['off']:
            e('s_branch L_service_done')
        self.c('each wave marks one part of the slots this workgroup fills at the end as empty (out of range = nothing to mark)')
        e(f's_lshl_b32 s{sT0}, s{sB}, 16\ns_lshl_b32 s{sT1}, s{sF}, 11\ns_add_u32 s{sT0}, s{sT0}, s{sT1}\ns_mul_i32 s{sT1}, s{sW}, 768')
        e(f's_add_u32 s{sT0}, s{sT0}, s{sT1}\ns_add_u32 s{sT2}, s{sT0}, {WS_YP - 768:#x}\ns_cmp_eq_u32 s{sROLE}, 2\ns_cselect_b32 s{sT2}, s{sT2}, {WS_SIZE:#x}')
        self.ap_base(sT0)
        e(f's_cmp_eq_u32 s{sROLE}, 1\ns_cselect_b32 s{sT0}, s{sT0}, {WS_SIZE:#x}\ns_cmp_eq_u32 s{sW}, 3\ns_cselect_b32 s{sT2}, s{sT0}, s{sT2}\ns_cselect_b32 s{sT3}, 15, 8')
        e(f's_lshl_b32 s{sT0}, s2, 10\ns_add_u32 s{sT0}, s{sT0}, {WS_OP:#x}\ns_cmp_eq_u32 s{sW}, 0\ns_cselect_b32 s{sT2}, s{sT0}, s{sT2}')
        e(f'v_lshlrev_b32 v10, s{sT3}, v{vG}\nv_lshl_add_u32 v10, v{vN}, 4, v10\nv_add_u32 v10, s{sT2}, v10')
        e(f'v_mov_b32 v56, -1\nv_mov_b32 v57, -1\nv_mov_b32 v58, -1\nv_mov_b32 v59, -1')
        e(f'buffer_store_dwordx4 v[56:59], v10, {sr(R_WS, 4)}, 0 offen sc1')
        self.srd(R_X, 4, 1792)
        self.srd(R_OUT, 24, 1792)
        self.srd(R_WB, 18, 1792 * 896)
        self.c('R_WA = wo for even heads, w1 for odd heads')
        e(f's_bitcmp1_b32 s{sHEAD}, 0')
        e(f's_cselect_b32 s{R_WA}, s16, s12\ns_cselect_b32 s{R_WA + 1}, s17, s13')
        e(f's_mov_b32 s{sT0}, {448 * 3584}\ns_cselect_b32 s{R_WA + 2}, s{sT0}, {4096 * 896}\ns_mov_b32 s{R_WA + 3}, 0x20000')
        e(f'v_mov_b32 v{aCNT}, {L_CNT}\nv_mov_b32 v{ONE}, 1')
        e(f's_cmp_eq_u32 s{sG}, 0\ns_cbranch_scc1 L_norole')
        e(f's_lshl_b32 s{sT0}, s{sW}, 9\nv_lshl_add_u32 v{aACTw}, v0, 3, s{sT0}')
        e(f'v_bfe_u32 v10, v0, 1, 1\nv_lshlrev_b32 v10, 8, v10\nv_lshl_add_u32 v10, v9, 4, v10\nv_add_u32 v{aACTr}, s{sT0}, v10')
        e(f's_lshl_b32 s{sT0}, s{sW}, 10\ns_add_u32 s{sT0}, s{sT0}, {L_RED}\nv_and_b32 v10, 3, v0\nv_lshlrev_b32 v10, 5, v10')
        e(f'v_lshl_add_u32 v10, v{vG}, 8, v10\nv_add_u32 v{aREDw}, s{sT0}, v10')
        e(f'v_lshlrev_b32 v10, 4, v{vN}\nv_lshl_add_u32 v{aREDr}, v{vG}, 10, v10')
        e(f'v_bfe_u32 v10, v0, 3, 1\nv_lshlrev_b32 v10, 14, v10\nv_lshl_add_u32 v10, v{vG}, 15, v10\nv_lshl_add_u32 v{aPUB}, v11, 4, v10')
        e(f'v_lshlrev_b32 v10, 14, v{vB}\nv_lshl_add_u32 v{aMA}, v{vI}, 4, v10')
        e(f's_cmp_eq_u32 s{sG}, 3\ns_cbranch_scc1 L_perm')

        def actfrags():
            e(f'v_cvt_pk_bf16_f32 v{CR}, v24, v25\nv_cvt_pk_bf16_f32 v{CR + 1}, v26, v27')
            e(f'ds_write_b64 v{aACTw}, {vr(CR, 2)} offset:{L_ACT}\nds_read_b128 {vr(AF, 4)}, v{aACTr} offset:{L_ACT}')

        def unpack4(d, a, b):
            e(f'v_and_b32 v{d + 3}, 0xffff0000, v{b}\nv_lshlrev_b32 v{d + 2}, 16, v{b}\nv_and_b32 v{d + 1}, 0xffff0000, v{a}\nv_lshlrev_b32 v{d}, 16, v{a}')
        e('s_waitcnt vmcnt(9)')
        unpack4(24, CR, CR + 1)
        self.silu([24, 25, 26, 27], [28, 29, 30, 31])
        actfrags()
        e(f's_cmp_lg_u32 s{sG}, 4\ns_cbranch_scc1 L_perm')
        self.c('scale blocks: layernorm of x (statistics with batch = lane>>5)')
        XF, NRM = 24, 52
        for k in range(7):
            e(f'v_lshlrev_b32 v{XF + 2 * k}, 16, v{XR + k}\nv_and_b32 v{XF + 2 * k + 1}, 0xffff0000, v{XR + k}')
        S, MEAN, TT, RINV = 38, 39, 40, 41
        e(f'v_add_f32 v{S}, v{XF}, v{XF + 1}\nv_add_f32 v{TT}, v{XF + 2}, v{XF + 3}')
        for k in range(4, 14, 2):
            e(f'v_add_f32 v{S}, v{S}, v{XF + k}\nv_add_f32 v{TT}, v{TT}, v{XF + k + 1}')
        e(f'v_add_f32 v{S}, v{S}, v{TT}')
        self.allred('v_add_f32', [S], [TT], 32)
        self.div448(MEAN, S, TT)
        for k in range(14):
            e(f'v_sub_f32 v{XF + k}, v{XF + k}, v{MEAN}')
        e(f'v_mul_f32 v{S}, v{XF}, v{XF}\nv_mul_f32 v{TT}, v{XF + 1}, v{XF + 1}')
        for k in range(2, 14, 2):
            e(f'v_fmac_f32 v{S}, v{XF + k}, v{XF + k}\nv_fmac_f32 v{TT}, v{XF + k + 1}, v{XF + k + 1}')
        e(f'v_add_f32 v{S}, v{S}, v{TT}')
        self.allred('v_add_f32', [S], [TT], 32)
        self.div448(RINV, S, TT)
        self.rnd2(MEAN, RINV, TT)
        e(f'v_add_f32 v{RINV}, {f2u(1e-5)}, v{RINV}')
        self.rnd(RINV, RINV)
        e(f'v_sqrt_f32 v{RINV}, v{RINV}')
        self.rnd(RINV, RINV)
        e(f'v_rcp_f32 v{RINV}, v{RINV}')
        e(f'v_mov_b32 v{S}, v{MEAN}\nv_mov_b32 v{TT}, v{RINV}\ns_mov_b32 vcc_lo, 0xff00ff00\ns_mov_b32 vcc_hi, 0xff00ff00')
        e(f'v_permlane32_swap_b32 v{MEAN}, v{S}\nv_permlane32_swap_b32 v{RINV}, v{TT}')
        e(f'v_cndmask_b32 v{MEAN}, v{MEAN}, v{S}, vcc\nv_cndmask_b32 v{RINV}, v{RINV}, v{TT}, vcc')
        unpack4(NRM, XE, XE + 1)
        for k in range(4):
            e(f'v_sub_f32 v{NRM + k}, v{NRM + k}, v{MEAN}')
        self.rnd2(NRM, NRM + 1, 28)
        self.rnd2(NRM + 2, NRM + 3, 29)
        for k in range(4):
            e(f'v_mul_f32 v{NRM + k}, v{NRM + k}, v{RINV}')
        self.rnd2(NRM, NRM + 1, 28)
        self.rnd2(NRM + 2, NRM + 3, 29)
        e('L_perm:')
        for r in range(4):
            e(f's_waitcnt vmcnt({7 - 2 * r})')
            for c in range(8):
                x = RAW + 8 * r + (c >> 1)
                e(f'v_perm_b32 v{FR + 4 * c + r}, v{x + 4}, v{x}, s{sPHI if c & 1 else sPLO}')
        self.stamp(2, 2)
        e(f's_waitcnt lgkmcnt(0)\ns_mul_i32 s{sTAG}, s{sE}, 0x9e3779b1\ns_add_u32 s{sTAG}, s{sTAG}, 0x7f4a7c15')
        if 'X' in o['off']:
            e('s_branch L_qdone')
        if 'Y' in o['off']:
            e('s_branch L_mfma')
        e(f's_cmp_lg_u32 s{sG}, 3\ns_cbranch_scc1 L_mfma')
        self.c('h = norm*(1+scale) + shift, both terms fetched as {two bf16 values, launch tag}')
        e(f's_sub_u32 s{sT0}, s{sBH}, 12\ns_lshl_b32 s{sT0}, s{sT0}, 15\ns_lshl_b32 s{sT1}, s{sW}, 9\ns_add_u32 s{sT2}, s{sT0}, s{sT1}')
        e('v_mov_b32 v32, 0\nv_mov_b32 v34, 0\nv_mov_b32 v36, 0\nv_mov_b32 v38, 0')
        e(f's_mov_b32 exec_lo, s{sVM}\ns_mov_b32 exec_hi, s{sVM}')
        ld = (f'buffer_load_dwordx4 v[32:35], v{aMA}, {sr(R_WS, 4)}, s{sT2} offen sc1\n'
              f'buffer_load_dwordx4 v[36:39], v{aMA}, {sr(R_WS, 4)}, s{sT2} offen offset:1792 sc1')
        self.tagpoll(ld, [33, 35, 37, 39], o['asleep'], first=(f's_sleep {o["adelay"]}\n' if o['adelay'] else '') + ld)
        e('s_mov_b64 exec, -1')
        self.stamp(9, 2)
        unpack4(24, 32, 34)
        unpack4(28, 36, 38)
        for k in range(4):
            e(f'v_add_f32 v{24 + k}, v{24 + k}, v{28 + k}')
        actfrags()
        e('s_waitcnt lgkmcnt(0)')
        e('L_mfma:')
        self.c('128 rows x 32 columns per wave; A row = (row quarter, batch), valid where it matches the lane quarter')
        for c in range(8):
            e(f'v_mfma_f32_16x16x32_bf16 {vr(ACC + 4 * c, 4)}, {vr(AF, 4)}, {vr(FR + 4 * c, 4)}, 0')
        e(f's_lshl_b32 s{sT2}, s{sU}, 7\ns_lshl_b32 s{sT3}, s{sW}, 17\ns_add_u32 s{sT2}, s{sT2}, s{sT3}')
        e(f's_cmp_eq_u32 s{sG}, 3\ns_cselect_b32 s{sT3}, {WS_QA:#x}, {WS_MA}\ns_add_u32 s{sT2}, s{sT2}, s{sT3}')
        e('s_mov_b32 exec_lo, 0x00f0000f\ns_mov_b32 exec_hi, 0xf0000f00')
        for c in range(8):
            e(f'ds_write2_b32 v{aREDw}, v{ACC + 4 * c}, v{ACC + 4 * c + 2} offset0:{c} offset1:{32 + c}')
        e(f's_mov_b64 exec, 1\nds_add_u32 v{aCNT}, v{ONE}\ns_mov_b64 exec, -1')
        self.stamp(7, 2)
        e(f's_bitcmp1_b32 s{sG}, 1\ns_cselect_b32 s{sT0}, s{sW}, 0\ns_cmp_lg_u32 s{sT0}, 0\ns_cbranch_scc1 L_getq')
        self.ldswait(aCNT, 0, 4, 32)
        for q in range(4):
            e(f'ds_read_b128 {vr(24 + 4 * q, 4)}, v{aREDr} offset:{L_RED + 256 * q}')
        e('s_waitcnt lgkmcnt(0)')
        for r in range(4):
            e(f'v_add_f32 v{24 + r}, v{24 + r}, v{28 + r}\nv_add_f32 v{32 + r}, v{32 + r}, v{36 + r}')
        for r in range(4):
            e(f'v_add_f32 v{24 + r}, v{24 + r}, v{32 + r}')
        self.rowred('v_add_f32', [24, 25, 26, 27], [28, 29, 30, 31], 64)
        e(f's_cmp_lg_u32 s{sG}, 4\ns_cbranch_scc1 L_pub')
        self.rnd2(24, 25, 28)
        self.rnd2(26, 27, 29)
        for k in range(4):
            e(f'v_add_f32 v{24 + k}, 1.0, v{24 + k}')
        self.rnd2(24, 25, 28)
        self.rnd2(26, 27, 29)
        for k in range(4):
            e(f'v_mul_f32 v{24 + k}, v{24 + k}, v{NRM + k}')
        e('L_pub:')
        self.c('publish; the shift and scale terms get sixteen copies')
        e(f'v_cvt_pk_bf16_f32 v24, v24, v25\nv_cvt_pk_bf16_f32 v26, v26, v27\nv_mov_b32 v25, s{sTAG}\nv_mov_b32 v27, s{sTAG}')
        e(f's_bitcmp1_b32 s{sG}, 1\ns_cselect_b32 exec_lo, 0xffff, -1\ns_cselect_b32 exec_hi, 0, -1')
        e(f'buffer_store_dwordx4 v[24:27], v{aPUB}, {sr(R_WS, 4)}, s{sT2} offen sc1')
        e('s_mov_b64 exec, -1')
        self.stamp(3)
        e('s_branch L_getq')
        e('L_norole:')
        e(f's_waitcnt lgkmcnt(0)\ns_mul_i32 s{sTAG}, s{sE}, 0x9e3779b1\ns_add_u32 s{sTAG}, s{sTAG}, 0x7f4a7c15')
        e('L_getq:')
        e(f's_cmp_lg_u32 s{sW}, 0\ns_cbranch_scc1 L_qdone')
        if set('PXY') & set(o['off']):
            e('s_branch L_qdone')
        self.c('wave 0 fetches q of this (batch, head)')
        e(f's_lshl_b32 s{sT2}, s{sBH}, 10\ns_add_u32 s{sT2}, s{sT2}, {WS_QA:#x}\nv_lshlrev_b32 v11, 4, v0\nv_lshlrev_b32 v10, 3, v0')
        e('s_waitcnt vmcnt(0)')
        if o['qdelay']:
            e(f's_cmp_eq_u32 s{sG}, 3\ns_cbranch_scc1 L_qgo\ns_sleep {o["qdelay"]}\nL_qgo:')
        self.tagpoll(f'buffer_load_dwordx4 v[36:39], v11, {sr(R_WS, 4)}, s{sT2} offen sc1', [37, 39], o['qsleep'])
        self.stamp(4)
        e(f'v_mov_b32 v37, v38\nds_write_b64 v10, v[36:37] offset:{L_Q}')
        e('L_qdone:')
        e('s_waitcnt vmcnt(0) lgkmcnt(0)')
        self.stamp(5)
        e('s_setprio 0')
        e('s_barrier')

        SC, EX, MX, SUM, T1, T2 = 64, 80, 32, 33, 34, 35
        aSC, aML, aST = 8, 9, 10
        CS = f2u(LOG2E / 16)
        e(f's_lshl_b32 s{sT0}, s{sW}, 12\nv_lshl_add_u32 v{aSC}, v0, 4, s{sT0}\nv_and_b32 v{aML}, 7, v0\nv_lshlrev_b32 v{aML}, 4, v{aML}')
        e(f's_lshl_b32 s{sT0}, s{sW}, 3\nv_mov_b32 v{aST}, s{sT0}\nv_lshlrev_b32 v11, 3, v{vG}')
        e(f's_mul_i32 s{sT4}, s{sBH}, {ML_STRIDE}\ns_add_u32 s{sT4}, s{sT4}, {WS_ML:#x}\ns_lshl_b32 s{sT3}, s{sS}, 4\ns_add_u32 s{sT3}, s{sT3}, s{sT4}')
        e('s_barrier')
        for k in range(4):
            e(f'ds_read_b128 {vr(SC + 4 * k, 4)}, v{aSC} offset:{L_SC + 1024 * k}')
        e('s_waitcnt lgkmcnt(0)')
        for k in range(0, 16, 2):
            self.rnd2(SC + k, SC + k + 1, T1 + ((k >> 1) & 1))
        e(f'v_max3_f32 v{MX}, v{SC}, v{SC + 1}, v{SC + 2}\nv_max3_f32 v{T1}, v{SC + 3}, v{SC + 4}, v{SC + 5}')
        e(f'v_max3_f32 v{MX}, v{MX}, v{SC + 6}, v{SC + 7}\nv_max3_f32 v{T1}, v{T1}, v{SC + 8}, v{SC + 9}')
        e(f'v_max3_f32 v{MX}, v{MX}, v{SC + 10}, v{SC + 11}\nv_max3_f32 v{T1}, v{T1}, v{SC + 12}, v{SC + 13}')
        e(f'v_max3_f32 v{MX}, v{MX}, v{SC + 14}, v{SC + 15}\nv_max_f32 v{MX}, v{MX}, v{T1}')
        self.allred('v_max_f32', [MX], [T1], 64)

        def exps(m):
            for k in range(16):
                e(f'v_sub_f32 v{EX + k}, v{SC + k}, v{m}')
            for k in range(16):
                e(f'v_mul_f32 v{EX + k}, {CS}, v{EX + k}')
            for k in range(16):
                e(f'v_exp_f32 v{EX + k}, v{EX + k}')
        exps(MX)
        e(f'v_add_f32 v{SUM}, v{EX}, v{EX + 1}\nv_add_f32 v{T1}, v{EX + 2}, v{EX + 3}')
        for k in range(4, 16, 2):
            e(f'v_add_f32 v{SUM}, v{SUM}, v{EX + k}\nv_add_f32 v{T1}, v{T1}, v{EX + k + 1}')
        e(f'v_add_f32 v{SUM}, v{SUM}, v{T1}')
        self.allred('v_add_f32', [SUM], [T1], 64)
        e(f's_mov_b64 exec, 1\nds_write_b64 v{aST}, {vr(MX, 2)} offset:{L_STAT}\nds_add_u32 v{aCNT}, v{ONE} offset:4\ns_mov_b64 exec, -1')
        e(f's_cmp_lg_u32 s{sW}, 0\ns_cbranch_scc1 L_mlwait')
        self.c('wave 0: combine the four waves, exchange (max, sum) with the other seven splits')
        self.ldswait(aCNT, 4, 4, T1)
        e(f'ds_read_b64 v[36:37], v11 offset:{L_STAT}\ns_waitcnt lgkmcnt(0)\nv_mov_b32 v40, v36')
        self.rowred('v_max_f32', [40], [T1], 64)
        e(f'v_sub_f32 v36, v36, v40\nv_mul_f32 v36, {CS}, v36\nv_exp_f32 v36, v36\nv_mov_b32 v41, s{sTAG}\nv_mul_f32 v42, v36, v37\nv_mov_b32 v43, s{sTAG}')
        self.rowred('v_add_f32', [42], [T1], 64)
        if 'M' not in o['off']:
            e(f's_mov_b64 exec, 1\nbuffer_store_dwordx4 v[40:43], off, {sr(R_WS, 4)}, s{sT3} sc1\ns_mov_b64 exec, -1\ns_waitcnt vmcnt(0)')
            self.tagpoll(f'buffer_load_dwordx4 v[36:39], v{aML}, {sr(R_WS, 4)}, s{sT4} offen sc1', [37, 39], o['mlsleep'])
        e(f'v_mov_b32 v{MX}, v36')
        for sh in (4, 2, 1):
            e(f'v_max_f32_dpp v{MX}, v{MX}, v{MX} row_ror:{sh} {DPPM}')
        e(f'v_sub_f32 v36, v36, v{MX}\nv_mul_f32 v36, {CS}, v36\nv_exp_f32 v36, v36')
        e(f'v_mul_f32 v{SUM}, v36, v38')
        for sh in (4, 2, 1):
            e(f'v_add_f32_dpp v{SUM}, v{SUM}, v{SUM} row_ror:{sh} {DPPM}')
        e(f'v_rcp_f32 v{SUM}, v{SUM}')
        e(f's_mov_b64 exec, 1\nds_write_b64 v{aST}, {vr(MX, 2)} offset:{L_STAT + 32}\nds_add_u32 v{aCNT}, v{ONE} offset:8\ns_mov_b64 exec, -1')
        e('s_branch L_mlgot')
        e('L_mlwait:')
        self.ldswait(aCNT, 8, 1, T1, sleep=1)
        e(f'ds_read_b64 {vr(MX, 2)}, v{aCNT} offset:{L_STAT + 32 - L_CNT}\ns_waitcnt lgkmcnt(0)')
        e('L_mlgot:')
        exps(MX)
        for k in range(16):
            e(f'v_mul_f32 v{EX + k}, v{EX + k}, v{SUM}')
        for k in range(16):
            e(f'v_cvt_pk_bf16_f32 v{EX + k}, v{EX + k}, v{EX + k}')
        for k in range(4):
            e(f'ds_write_b128 v{aSC}, {vr(EX + 4 * k, 4)} offset:{L_SC + 1024 * k}')
        e('s_waitcnt lgkmcnt(0)')
        self.stamp(6, 1)
        e('s_barrier')
        if 'E' in o['off']:
            e('s_branch L_service_done')
        e(f's_cmp_eq_u32 s{sROLE}, 0\ns_cbranch_scc1 L_service_done')
        self.c('all 256 workgroups have published their statistics, hence emptied their slots and read the tag')
        if 'M' not in o['off']:
            e(f'v_lshrrev_b32 v11, 3, v0\nv_mul_u32_u24 v11, {ML_STRIDE}, v11\nv_add_u32 v11, v11, v{aML}')
            e(f's_mul_i32 s{sT2}, s{sW}, {8 * ML_STRIDE}\ns_add_u32 s{sT2}, s{sT2}, {WS_ML:#x}')
            ld = f'buffer_load_dword v32, v11, {sr(R_WS, 4)}, s{sT2} offen offset:4'
            self.tagpoll(ld + ' sc1', [32], 64, first='s_sleep 127\ns_sleep 127\n' + ld)
        G0, AF, ACC = 32, 48, 56
        Q0, Q1, Q2, Q3, Q4 = 96, 128, 160, 192, 224
        aG, aAw, aAr, aRw, aRr, aW, aP = 8, 9, 10, 12, 13, 14, 15
        sSZA, sSZB, sKEEP = 36, 37, 38
        self.c('addresses shared by both epilogue roles')
        e(f'v_lshlrev_b32 v11, 3, v{vI}\nv_lshl_add_u32 v11, v{vB}, 2, v11\ns_lshl_b32 s{sT0}, s{sW}, 9\nv_add_u32 v{aAw}, s{sT0}, v11')
        e(f'v_lshrrev_b32 v6, 3, v0\nv_and_b32 v7, 7, v0\nv_lshl_add_u32 v{aAr}, v6, 4, s{sT0}')
        e(f'v_and_b32 v5, 1, v{vG}\nv_lshlrev_b32 v{aRw}, 4, v5\nv_lshl_add_u32 v{aRw}, v7, 5, v{aRw}\nv_lshl_add_u32 v{aRw}, v{vB}, 8, v{aRw}\nv_add_u32 v{aRw}, s{sT0}, v{aRw}')
        e('s_mov_b32 s50, 0xffff0000\ns_mov_b32 s51, 0xffff0000')
        e(f's_mov_b32 s{R_ST}, s{R_WS}\ns_mov_b32 s{R_ST + 1}, s{R_WS + 1}\ns_mov_b32 s{R_ST + 3}, 0x20000')
        e(f's_mov_b32 s{sSZA}, s{R_WA + 2}\ns_mov_b32 s{sSZB}, s{R_WB + 2}\ns_mov_b32 s{sDRY}, {1 if o["dry"] else 0}')

        def arm(lbl):
            e(f's_mov_b32 s{sKEEP}, s{sSPIN}')
            e(f'{lbl}:')
            e(f's_cmp_lg_u32 s{sDRY}, 0\ns_cselect_b32 s{sSPIN}, 0, s{sKEEP}\ns_cselect_b32 s{R_WA + 2}, 0, s{sSZA}\ns_cselect_b32 s{R_WB + 2}, 0, s{sSZB}')
            e(f's_cselect_b32 s{R_ST + 2}, 0, {WS_SIZE:#x}\ns_cselect_b32 s{R_OUT + 2}, 0, 1792')
            self.bar()
            self.stamp(7, 1)

        def again(lbl):
            e(f's_mov_b64 exec, -1\ns_cmp_eq_u32 s{sDRY}, 0\ns_cbranch_scc1 L_service_done')
            e(f's_waitcnt vmcnt(0) lgkmcnt(0)\ns_mov_b32 s{sDRY}, 0\ns_branch {lbl}')

        def halves(dst):
            for c in range(4):
                e(f'v_cndmask_b32 v{dst + c}, v{ACC + 4 * c}, v{ACC + 16 + 4 * c}, s[50:51]')

        def redwrite():
            halves(G0)
            e('s_mov_b32 exec_lo, 0x00ff00ff\ns_mov_b32 exec_hi, 0xff00ff00')
            e(f'ds_write_b128 v{aRw}, {vr(G0, 4)} offset:{L_RED}\ns_mov_b64 exec, -1\ns_waitcnt lgkmcnt(0)')
            self.bar()
        e(f's_cmp_eq_u32 s{sROLE}, 2\ns_cbranch_scc1 L_stage2')

        e(f'v_lshlrev_b32 v{aG}, 4, v{vI}\nv_lshl_add_u32 v{aG}, v{vB}, 10, v{aG}')
        e(f's_lshr_b32 s{sT0}, s{sW}, 1\ns_add_u32 s{sT0}, s{sT0}, s{sBH}\ns_lshl_b32 s{sT0}, s{sT0}, 13')
        e(f's_and_b32 s{sT1}, s{sW}, 1\ns_lshl_b32 s{sT1}, s{sT1}, 9\ns_add_u32 s{sT0}, s{sT0}, s{sT1}')
        e(f's_add_u32 s22, s{sT0}, {WS_OP:#x}\ns_add_u32 s23, s22, 0x1000')
        e(f'v_lshlrev_b32 v11, 4, v{vN}\nv_lshl_add_u32 v{aRr}, v{vG}, 9, v11\nv_lshl_add_u32 v{aP}, v{vG}, 15, v11')
        e(f'v_mul_u32_u24 v{aW}, {8 * 896}, v6\nv_lshl_add_u32 v{aW}, v7, 4, v{aW}')
        e(f's_lshl_b32 s{sT0}, s{sHEAD}, 1\ns_add_u32 s{sT0}, s{sT0}, s{sW}\ns_mul_i32 s25, s{sT0}, {128 * 896}')
        e(f's_lshl_b32 s{sT0}, s{sS}, 7\ns_add_u32 s25, s25, s{sT0}\ns_movk_i32 s{sT3}, 896')
        self.ap_base(24)
        arm('L_run1')
        e(f's_mov_b32 s{sT2}, s25')
        self.unitloads(Q0, aW, R_WA, sT2, sT3, wp)
        e(f's_add_u32 s{sT2}, s{sT2}, {56 * 896}')
        self.unitloads(Q1, aW, R_WA, sT2, sT3, wp)
        self.unitperm(Q0, Q2, 8)
        self.unitperm(Q1, Q3, 0)
        self.stamp(2, 1)
        self.poll([(G0 + 4 * k, f'buffer_load_dwordx4 {vr(G0 + 4 * k, 4)}, v{aG}, {sr(R_WS, 4)}, s{22 + (k >> 1)} offen offset:{2048 * (k & 1)} sc1')
                   for k in range(4)], 4, 30)
        self.stamp(8, 1)
        self.sum4x4(G0)
        e(f'v_cvt_pk_bf16_f32 v{G0}, v{G0}, v{G0 + 1}\nds_write_b32 v{aAw}, v{G0} offset:{L_ACT}')
        e(f'ds_read_b128 {vr(AF, 4)}, v{aAr} offset:{L_ACT}\nds_read_b128 {vr(AF + 4, 4)}, v{aAr} offset:{L_ACT + 128}\ns_waitcnt lgkmcnt(0)')
        self.mfma8(ACC, AF, Q2, True)
        self.mfma8(ACC, AF + 4, Q3, False)
        redwrite()
        e(f's_cmp_lg_u32 s{sW}, 0\ns_cbranch_scc1 L_end1')
        e(f'ds_read_b128 {vr(G0, 4)}, v{aRr} offset:{L_RED}\nds_read_b128 {vr(G0 + 4, 4)}, v{aRr} offset:{L_RED + 256}\ns_waitcnt lgkmcnt(0)')
        self.pk('add', G0, G0, G0 + 4)
        self.pk('add', G0 + 2, G0 + 2, G0 + 6)
        self.rowred('v_add_f32', [G0, G0 + 1, G0 + 2, G0 + 3], [G0 + 4, G0 + 5, G0 + 6, G0 + 7], 64)
        for r in range(4):
            e(f'v_min_u32 v{G0 + r}, -2, v{G0 + r}')
        e(f'buffer_store_dwordx4 {vr(G0, 4)}, v{aP}, {sr(R_ST, 4)}, s24 offen sc1')
        self.stamp(9, 1)
        e('L_end1:')
        again('L_run1')

        e('L_stage2:')
        GA, SB, CB, XX, GB = 16, 18, 20, 22, 24
        aUw, aUr, aX1w, aX1r, aST, aPRE, aY3, aO3, aW2, NW = 25, 26, 27, 28, 29, 88, 89, 90, 91, 92
        self.c('lane (half, i): columns 128w + 4i + 2*half + {0,1}; wave 3 has only 64 columns')
        e(f's_mov_b32 s48, s{sVM}\ns_mov_b32 s49, s{sVM}\ns_lshl_b32 s{sT0}, s{sW}, 9')
        e(f'v_lshlrev_b32 v{aX1w}, 1, v11\nv_add_u32 v{aX1w}, s{sT0}, v{aX1w}\nv_cndmask_b32 v33, 0, v{aX1w}, s[48:49]')
        e(f'v_lshl_add_u32 v{aG}, v{vI}, 4, s{sT0}\nv_lshl_add_u32 v{aG}, v{vB}, 11, v{aG}')
        self.c('final column of a lane: 16f + 4(lane&3) + 2(lane>>5) + ((lane>>4)&1)')
        e(f'v_and_b32 v34, 3, v0\nv_lshlrev_b32 v35, 2, v34\nv_lshl_add_u32 v35, v{vB}, 1, v35\nv_add_u32 v35, v35, v5')
        e(f's_lshl_b32 s{sT1}, s{sF}, 6\nv_lshl_add_u32 v{aX1r}, v35, 2, s{sT1}\nv_and_b32 v36, -8, v{aX1r}')
        e(f'v_lshrrev_b32 v35, 2, v0\nv_lshlrev_b32 v35, 11, v35\nv_lshl_add_u32 v35, v34, 4, v35\nv_add_u32 v{aY3}, s{sT1}, v35')
        e(f's_lshl_b32 s{sT2}, s{sB}, 14\ns_add_u32 s{sT2}, s{sT2}, {WS_MA + 3584}\ns_add_u32 s{sT3}, s{sT2}, 5376')
        if 'P' not in o['off']:
            self.tagpoll(f'buffer_load_dwordx2 {vr(GA, 2)}, v33, {sr(R_WS, 4)}, s{sT2} offen sc1\n'
                         f'buffer_load_dwordx2 {vr(SB, 2)}, v33, {sr(R_WS, 4)}, s{sT2} offen offset:1792 sc1\n'
                         f'buffer_load_dwordx2 {vr(CB, 2)}, v33, {sr(R_WS, 4)}, s{sT2} offen offset:3584 sc1\n'
                         f'buffer_load_dwordx2 v[34:35], v36, {sr(R_WS, 4)}, s{sT3} offen sc1', [GA + 1, SB + 1, CB + 1, 35], 8)
        e(f'v_lshrrev_b32 v33, 1, v33\ns_mul_i32 s{sT0}, s{sB}, 896')
        e(f'buffer_load_dword v{XX}, v33, {sr(R_X, 4)}, s{sT0} offen')
        for r in (GA, SB, CB):
            e(f'v_and_b32 v{r + 1}, 0xffff0000, v{r}\nv_lshlrev_b32 v{r}, 16, v{r}')
        e(f'v_lshlrev_b32 v35, 4, v5\nv_lshrrev_b32 v34, v35, v34\nv_lshlrev_b32 v{GB}, 16, v34')
        e(f'v_lshrrev_b32 v{aO3}, 1, v{aX1r}\nv_add_u32 v{aO3}, s{sT0}, v{aO3}')
        e(f'v_add_f32 v{CB}, 1.0, v{CB}\nv_add_f32 v{CB + 1}, 1.0, v{CB + 1}')
        self.rnd2(CB, CB + 1, 32)
        for r in (SB, SB + 1, CB, CB + 1):
            e(f'v_cndmask_b32 v{r}, 0, v{r}, s[48:49]')
        e(f'v_lshlrev_b32 v{aRr}, 2, v0\nv_add_u32 v{aRr}, {L_RED}, v{aRr}')
        e(f's_lshl_b32 s{sT0}, s{sW}, 9\nv_lshlrev_b32 v{aP}, 5, v{vN}\nv_lshl_add_u32 v{aP}, v5, 4, v{aP}\nv_add_u32 v{aP}, s{sT0}, v{aP}')
        e(f's_lshl_b32 s{sT0}, s{sW}, 7\nv_lshl_add_u32 v{aUw}, v0, 1, s{sT0}\nv_lshl_add_u32 v{aUr}, v{vG}, 4, s{sT0}')
        e(f's_lshl_b32 s{sT0}, s{sW}, 4\nv_mov_b32 v{aST}, s{sT0}\nv_lshlrev_b32 v{aPRE}, 10, v{vI}')
        e(f'v_cmp_eq_u32 vcc, 3, v{vG}\nv_mov_b32 v32, {f2u(128.0)}\nv_mov_b32 v33, {f2u(64.0)}\nv_cndmask_b32 v{NW}, v32, v33, vcc\nv_lshlrev_b32 v93, 4, v{vG}')
        self.c('w1 rows 128w + 64u + 8(lane>>3) + e (past 447: zero); w2 rows 64f + 32t + 8g + e, columns 128w + 8n')
        e(f's_lshl_b32 s{sT0}, s{sW}, 4\nv_add_u32 v32, s{sT0}, v6\nv_mul_u32_u24 v32, {8 * 3584}, v32\nv_lshl_add_u32 v32, v7, 4, v32')
        e(f's_lshl_b32 s{sT0}, s{sF}, 7\nv_add_u32 v{aW}, s{sT0}, v32\nv_add_u32 v94, {64 * 3584}, v{aW}')
        e(f'v_mul_u32_u24 v{aW2}, {8 * 896}, v{vG}\nv_lshl_add_u32 v{aW2}, v{vN}, 4, v{aW2}')
        e(f's_mul_i32 s39, s{sF}, {64 * 896}\ns_lshl_b32 s{sT0}, s{sW}, 8\ns_add_u32 s39, s39, s{sT0}')
        e(f's_lshl_b32 s{sT0}, s{sB}, 17\ns_lshl_b32 s{sT1}, s{sW}, 15\ns_add_u32 s{sT0}, s{sT0}, s{sT1}\ns_add_u32 s26, s{sT0}, {WS_OP:#x}')
        e(f's_lshr_b32 s{sT1}, s{sF}, 3\ns_lshl_b32 s{sT1}, s{sT1}, 8\ns_add_u32 s26, s26, s{sT1}\ns_lshl_b32 s{sT1}, s{sT1}, 7')
        e(f's_lshl_b32 s{sT0}, s{sB}, 14\ns_add_u32 s{sT0}, s{sT0}, s{sT1}\ns_add_u32 s22, s{sT0}, {WS_AP:#x}\ns_add_u32 s23, s22, 0x1000\ns_add_u32 s24, s23, 0x1000\ns_add_u32 s25, s24, 0x1000')
        e(f's_lshl_b32 s{sT0}, s{sB}, 16\ns_add_u32 s28, s{sT0}, {WS_YP:#x}\ns_lshl_b32 s{sT1}, s{sF}, 11\ns_add_u32 s27, s28, s{sT1}\ns_add_u32 s21, s28, 0x8000')
        e(f's_cmp_eq_u32 s{sW}, 3\ns_cselect_b32 s29, 0x00ff00ff, -1')
        e('s_waitcnt vmcnt(0)')
        e(f'v_and_b32 v{XX + 1}, 0xffff0000, v{XX}\nv_lshlrev_b32 v{XX}, 16, v{XX}')
        arm('L_run2')
        e(f's_movk_i32 s{sT3}, 3584\ns_mov_b32 s{sT2}, 0')
        self.unitloads(Q0, aW, R_WA, sT2, sT3, wp)
        e(f's_mov_b32 s{sT2}, 0')
        self.unitloads(Q1, 94, R_WA, sT2, sT3, wp)
        e(f's_movk_i32 s{sT3}, 896\ns_mov_b32 s{sT2}, s39')
        self.unitloads(Q2, aW2, R_WB, sT2, sT3, wp)
        e(f's_add_u32 s{sT2}, s{sT2}, {24 * 896}')
        self.unitloads(Q3, aW2, R_WB, sT2, sT3, wp)
        self.unitperm(Q0, Q4, 24)
        self.unitperm(Q1, Q0, 16)
        self.unitperm(Q2, Q1, 8)
        self.unitperm(Q3, Q2, 0)
        self.stamp(2, 1)
        self.poll([(32, f'buffer_load_dword v32, v{aPRE}, {sr(R_WS, 4)}, s26 offen sc1')], 1, 30, sleep=o['presleep'])
        for r in range(16):
            e(f'v_mov_b32 v{G0 + r}, 0')
        self.poll([(G0 + 4 * k, f'buffer_load_dwordx4 {vr(G0 + 4 * k, 4)}, v{aG}, {sr(R_WS, 4)}, s{22 + k} offen sc1') for k in range(4)],
                  4, 30, first=['s_mov_b64 exec, s[48:49]', None, None, None])
        self.stamp(8, 1)
        self.sum4x4(G0)
        X1, D0, KK, S1, S2, MEAN, RINV = 36, 38, 40, 41, 42, 44, 46
        self.rnd2(G0, G0 + 1, 30)
        self.pk('mul', G0, G0, GA)
        self.rnd2(G0, G0 + 1, 30)
        self.pk('add', X1, G0, XX)
        self.rnd2(X1, X1 + 1, 30)
        self.c('statistics about a per-wave shift')
        e(f'v_readfirstlane_b32 s{sT0}, v{X1}\nds_write_b64 v{aX1w}, {vr(X1, 2)} offset:{L_X1}')
        e(f'v_subrev_f32 v{D0}, s{sT0}, v{X1}\nv_subrev_f32 v{D0 + 1}, s{sT0}, v{X1 + 1}\nv_mov_b32 v{KK}, s{sT0}')
        e(f'v_add_f32 v{S1}, v{D0}, v{D0 + 1}\nv_mul_f32 v{S2}, v{D0}, v{D0}\nv_fmac_f32 v{S2}, v{D0 + 1}, v{D0 + 1}')
        e(f'v_cndmask_b32 v{S1}, 0, v{S1}, s[48:49]\nv_cndmask_b32 v{S2}, 0, v{S2}, s[48:49]')
        self.allred('v_add_f32', [S1, S2], [30, 31], 64)
        e(f'ds_write_b96 v{aST}, {vr(KK, 3)} offset:{L_STAT}\ns_waitcnt lgkmcnt(0)')
        self.bar()
        e(f'ds_read_b96 {vr(KK, 3)}, v93 offset:{L_STAT}\ns_waitcnt lgkmcnt(0)')
        e(f'v_fma_f32 v43, v{NW}, v{KK}, v{S1}')
        self.rowred('v_add_f32', [43], [30], 64)
        self.div448(MEAN, 43, 30)
        e(f'v_sub_f32 v{KK}, v{MEAN}, v{KK}\nv_mul_f32 v{S1}, -2.0, v{S1}\nv_fmac_f32 v{S1}, v{NW}, v{KK}\nv_fmac_f32 v{S2}, v{S1}, v{KK}')
        self.rnd(MEAN, MEAN)
        self.rowred('v_add_f32', [S2], [30], 64)
        e(f'v_sub_f32 v{D0}, v{X1}, v{MEAN}\nv_sub_f32 v{D0 + 1}, v{X1 + 1}, v{MEAN}')
        e(f'v_mul_f32 v{RINV}, {f2u(1 / 448)}, v{S2}\nv_max_f32 v{RINV}, 0, v{RINV}')
        self.rnd(RINV, RINV)
        e(f'v_add_f32 v{RINV}, {f2u(1e-5)}, v{RINV}')
        self.rnd(RINV, RINV)
        e(f'v_sqrt_f32 v{RINV}, v{RINV}')
        self.rnd2(D0, D0 + 1, 30)
        self.rnd(RINV, RINV)
        e(f'v_rcp_f32 v{RINV}, v{RINV}')
        e(f'v_mul_f32 v{D0}, v{D0}, v{RINV}\nv_mul_f32 v{D0 + 1}, v{D0 + 1}, v{RINV}')
        self.rnd2(D0, D0 + 1, 30)
        self.pk('mul', D0, D0, CB)
        self.rnd2(D0, D0 + 1, 30)
        self.pk('add', D0, D0, SB)
        e(f'v_cvt_pk_bf16_f32 v30, v{D0}, v{D0 + 1}\nds_write_b32 v{aAw}, v30 offset:{L_ACT}')
        e(f'ds_read_b128 {vr(AF, 4)}, v{aAr} offset:{L_ACT}\nds_read_b128 {vr(AF + 4, 4)}, v{aAr} offset:{L_ACT + 128}')
        e(f'ds_read_b32 v47, v{aX1r} offset:{L_X1}\ns_waitcnt lgkmcnt(0)')
        self.mfma8(ACC, AF, Q4, True)
        self.mfma8(ACC, AF + 4, Q0, False)
        redwrite()
        for k in range(4):
            e(f'ds_read2st64_b32 {vr(G0 + 2 * k, 2)}, v{aRr} offset0:{2 * k} offset1:{2 * k + 1}')
        e('s_waitcnt lgkmcnt(0)')
        self.pk('add', G0, G0, G0 + 2)
        self.pk('add', G0 + 4, G0 + 4, G0 + 6)
        self.pk('add', G0, G0, G0 + 4)
        e(f'v_add_f32 v{G0}, v{G0}, v{G0 + 1}')
        self.rnd(G0, G0)
        self.silu([G0], [G0 + 1])
        e(f'v_cvt_pk_bf16_f32 v{G0}, v{G0}, v{G0}\nds_write_b16 v{aUw}, v{G0} offset:{L_H}')
        e(f'ds_read_b128 {vr(AF, 4)}, v{aUr} offset:{L_H}\nds_read_b128 {vr(AF + 4, 4)}, v{aUr} offset:{L_H + 64}\ns_waitcnt lgkmcnt(0)')
        self.mfma8(ACC, AF, Q1, True)
        self.mfma8(ACC, AF + 4, Q2, False)
        halves(G0 + 8)
        for c in range(4):
            e(f'v_min_u32 v{G0 + 8 + c}, -2, v{G0 + 8 + c}')
        e(f's_mov_b32 exec_lo, s29\ns_mov_b32 exec_hi, 0')
        e(f'buffer_store_dwordx4 {vr(G0 + 8, 4)}, v{aP}, {sr(R_ST, 4)}, s27 offen sc1')
        e('s_mov_b64 exec, -1')
        self.stamp(1)
        e(f's_cmp_lg_u32 s{sW}, 0\ns_cbranch_scc1 L_end2')

        for r in range(4):
            e(f'v_mov_b32 v{G0 + 4 + r}, 0')
        self.poll([(G0, f'buffer_load_dwordx4 {vr(G0, 4)}, v{aY3}, {sr(R_WS, 4)}, s28 offen sc1'),
                   (G0 + 4, f'buffer_load_dwordx4 {vr(G0 + 4, 4)}, v{aY3}, {sr(R_WS, 4)}, s21 offen sc1')], 4, 30,
                  first=[None, 's_mov_b32 exec_hi, 0xffff'])
        self.pk('add', G0, G0, G0 + 4)
        self.pk('add', G0 + 2, G0 + 2, G0 + 6)
        e(f'v_permlane32_swap_b32 v{G0}, v{G0 + 2}\nv_permlane32_swap_b32 v{G0 + 1}, v{G0 + 3}')
        self.pk('add', G0, G0, G0 + 2)
        e(f'v_permlane16_swap_b32 v{G0}, v{G0 + 1}\nv_add_f32 v{G0}, v{G0}, v{G0 + 1}')
        for sh in (8, 4):
            e(f'v_add_f32_dpp v{G0}, v{G0}, v{G0} row_ror:{sh} {DPPM}')
        self.rnd(G0, G0)
        e(f'v_mul_f32 v{G0}, v{G0}, v{GB}')
        self.rnd(G0, G0)
        e(f'v_add_f32 v{G0}, v{G0}, v47\nv_cvt_pk_bf16_f32 v{G0}, v{G0}, v{G0}')
        e(f's_mov_b32 exec_lo, 0x000f000f\ns_mov_b32 exec_hi, 0x000f000f\nbuffer_store_short v{G0}, v{aO3}, {sr(R_OUT, 4)}, 0 offen')
        self.stamp(9, 1)
        self.c('every reader of the launch tag is done: advance it so a later launch cannot accept these granules')
        e(f's_cmp_lg_u32 s2, 8\ns_cbranch_scc1 L_end2')
        e(f's_add_u32 s{sT1}, s{sE}, 1\nv_mov_b32 v30, {WS_EP:#x}\nv_mov_b32 v31, s{sT1}\ns_mov_b64 exec, 1')
        e(f'buffer_store_dword v31, v30, {sr(R_ST, 4)}, 0 offen sc1')
        e('L_end2:')
        again('L_run2')
        e('L_service_done:')
        self.stamp_flush(0)
        e('L_end:')
        e('s_endpgm')

    def ap_base(self, d):
        e = self.e
        e(f's_lshr_b32 s{d}, s{sBH}, 1\ns_lshl_b32 s{d}, s{d}, 11\ns_lshl_b32 s{sT1}, s{sS}, 8')
        e(f's_add_u32 s{d}, s{d}, s{sT1}\ns_add_u32 s{d}, s{d}, {WS_AP:#x}')

    def build(self):
        self.entry()
        self.stream()
        self.service()
        lines, n = hazard.fix(self.L)
        ref = open(os.path.join(os.path.dirname(os.path.abspath(__file__)), 'head.txt')).read()
        txt = ref + f'; @launch grid=(256,1,1) block=(512,1,1) lds={L_EXT + 4096 * max(self.o["ext"])}\n'
        txt += f'.amdgcn_target "amdgcn-amd-amdhsa--gfx950"\n.text\n.globl {KERNEL}\n.p2align 8\n.type {KERNEL},@function\n{KERNEL}:\n'
        txt += '\n'.join(lines) + '\n'
        txt += f'''.section .rodata,"a"
.p2align 6
.amdhsa_kernel {KERNEL}
  .amdhsa_next_free_vgpr 256
  .amdhsa_next_free_sgpr 102
  .amdhsa_accum_offset 256
  .amdhsa_group_segment_fixed_size 0
  .amdhsa_kernarg_size 104
  .amdhsa_user_sgpr_count 2
  .amdhsa_user_sgpr_kernarg_segment_ptr 1
  .amdhsa_system_sgpr_workgroup_id_x 1
.end_amdhsa_kernel
'''
        return txt


if __name__ == '__main__':
    out = sys.argv[1]
    opts = eval('dict(' + (sys.argv[2] if len(sys.argv) > 2 else '') + ')')
    open(out, 'w').write(Gen(**opts).build())
```

```python
import sys
from asmlib import *
def gen(name, seq, pre=()):
    L = []; e = L.append
    e('s_cmp_ge_u32 s2, 256'); e('s_cbranch_scc1 L_end')
    e('s_load_dwordx16 s[4:19], s[0:1], 0'); e('s_load_dwordx8 s[20:27], s[0:1], 64'); e('s_load_dwordx2 s[28:29], s[0:1], 96')
    e('v_lshlrev_b32 v1, 28, v0'); e('v_min_u32 v1, 1, v0'); e('v_lshlrev_b32 v1, 29, v1'); e('v_mov_b32 v20, 0'); e('s_lshr_b32 s3, s2, 3'); e('L_w:'); e('s_sleep 100'); e('s_sub_u32 s3, s3, 1'); e('s_cbranch_scc0 L_w')
    e('s_waitcnt lgkmcnt(0)')
    for (ka, base, mul) in pre:
        p = 4 + ka // 4
        e(f's_mul_i32 s40, s2, {mul}'); e(f's_add_u32 s40, s40, {base}'); e(f's_load_dword s41, s[{p}:{p+1}], s40')
    if pre: e('s_waitcnt lgkmcnt(0)')
    for i, (ka, base, mul, pol, kind) in enumerate(seq):
        p = 4 + ka // 4
        e(f's_mov_b32 s36, s{p}'); e(f's_mov_b32 s37, s{p+1}'); e('s_mov_b32 s38, 0x20000000' if ka in (8, 16) else ('s_mov_b32 s38, 0x10000000' if ka == 96 else 's_mov_b32 s38, 0x180000')); e('s_mov_b32 s39, 0x20000')
        e('s_and_b32 s40, s2, 7'); e('s_lshl_b32 s40, s40, 7'); e(f's_add_u32 s40, s40, {base}')
        e('s_memtime s[42:43]'); e('s_waitcnt lgkmcnt(0)')
        if kind == 'ld': e(f'buffer_load_dwordx4 v[4:7], v1, s[36:39], s40 offen {pol}')
        else: e(f'buffer_store_dwordx4 v[4:7], v1, s[36:39], s40 offen {pol}')
        e('s_waitcnt vmcnt(0)')
        e('s_memtime s[44:45]'); e('s_waitcnt lgkmcnt(0)')
        e('s_sub_u32 s44, s44, s42'); e(f'v_writelane_b32 v20, s44, {i}')
    e('s_lshl_b32 s33, s2, 6'); e('s_add_u32 s33, s33, 0x1000'); e('v_lshl_add_u32 v8, v0, 2, s33')
    e('s_mov_b64 exec, 0xffff')
    e('global_store_dword v8, v20, s[28:29]')
    e('L_end:'); e('s_endpgm')
    txt = header('k') + '\n'.join('    ' + x if not x.endswith(':') else x for x in L) + '\n' + descriptor('k', 24, 48, 24) + metadata([('k', 48, 24, 64)])
    assemble(txt, name)
    return f'{name}.co:k:256:64:0:256'
if __name__ == '__main__':
    import os
    os.makedirs('sb', exist_ok=True)
    M = 1 << 20
    K, V, WQ, WO, W1, W2, WS = 8, 16, 24, 32, 48, 56, 96
    B = 64 * M
    specs = [gen('sb/lat_a', [(WS, B, 16, 'sc1', 'st')] + [(WS, B + (1 << k), 16, 'sc1', 'st') for k in range(12, 26)] + [(WS, B, 16, 'sc1', 'st')])]
    open('sb/specs_lat.txt', 'w').write(' '.join(specs)); print(' '.join(specs))
```
